```python
import torch

def _softmax(x, axis=-1):
    return torch.softmax(x, dim=axis)
def _gelu(x):
    return torch.nn.functional.gelu(x, approximate="tanh")
def _silu(x):
    return torch.nn.functional.silu(x)
def _sigmoid(x):
    return torch.sigmoid(x)
def _layernorm(x, axis=-1, eps=1e-5):
    m = x.mean(dim=axis, keepdim=True)
    v = x.var(dim=axis, keepdim=True, unbiased=False)
    return (x - m) / torch.sqrt(v + eps)
def _scatter_add(tgt, idx, src, axis=0):
    return tgt.clone().index_add_(axis, idx, src)
def _segment_sum(src, seg, n):
    out = torch.zeros((n,) + src.shape[1:], dtype=src.dtype)
    return out.index_add_(0, seg, src)
def _pad(x, pw):
    flat = tuple(v for pair in reversed(pw) for v in pair)
    return torch.nn.functional.pad(x, flat)

kernel_name = 'gated_mix__ssm_conv_s4__dense_activation_gelu__prompt'

def setup_inputs():

    _w = (lambda a: (lambda t: t.to(torch.bfloat16) if t.is_floating_point() else t)(torch.as_tensor(a)))
    def _A_setup():
        B, L, D, N = 1, 2048, 640, 128
        A_re = -(lambda _x: torch.exp(torch.as_tensor(_x)))((lambda *s: torch.randn(*s, dtype=torch.bfloat16) * 3.2)(D, N))
        A_im = torch.pi * (lambda *s: torch.randn(*s, dtype=torch.bfloat16) * 0.05)(D, N)
        B_re = (lambda *s: torch.randn(*s, dtype=torch.bfloat16) * 0.1)(D, N)
        B_im = (lambda *s: torch.randn(*s, dtype=torch.bfloat16) * 0.1)(D, N)
        C_re = (lambda *s: torch.randn(*s, dtype=torch.bfloat16) * 0.1)(D, N)
        C_im = (lambda *s: torch.randn(*s, dtype=torch.bfloat16) * 0.1)(D, N)
        log_dt = (lambda *s: torch.randn(*s, dtype=torch.bfloat16) * 0.05)(D) * 0.5 - 4.0
        Dskip = (lambda *s: torch.randn(*s, dtype=torch.bfloat16) * 0.05)(D)
        return {
            "u": _w((lambda *s: torch.randn(*s, dtype=torch.bfloat16) * 0.05)(B, L, D)),
            "A_re": _w(A_re),
            "A_im": _w(A_im),
            "B_re": _w(B_re),
            "B_im": _w(B_im),
            "C_re": _w(C_re),
            "C_im": _w(C_im),
            "log_dt": _w(log_dt),
            "Dskip": _w(Dskip),
        }
    _A_in = _A_setup()

    def _B_setup():
        B, S, D, F = 1, 2048, 640, 1728
        return {
            "x": _w((lambda *s: torch.randn(*s, dtype=torch.bfloat16) * 0.05)(B, S, D)),
            "w1": _w((lambda *s: torch.randn(*s, dtype=torch.bfloat16) * 3.2)(D, F) * (D ** -0.5)),
            "b1": _w((lambda *s: torch.randn(*s, dtype=torch.bfloat16) * 3.2)(F) * 0.01),
            "w2": _w((lambda *s: torch.randn(*s, dtype=torch.bfloat16) * 0.1)(F, D) * (F ** -0.5)),
            "b2": _w((lambda *s: torch.randn(*s, dtype=torch.bfloat16) * 0.2)(D) * 0.01),
        }
    _B_in = _B_setup()

    return {
        "A_u": _A_in["u"],
        "A_A_re": _A_in["A_re"],
        "A_A_im": _A_in["A_im"],
        "A_B_re": _A_in["B_re"],
        "A_B_im": _A_in["B_im"],
        "A_C_re": _A_in["C_re"],
        "A_C_im": _A_in["C_im"],
        "A_log_dt": _A_in["log_dt"],
        "A_Dskip": _A_in["Dskip"],
        "B_x": _B_in["x"],
        "B_w1": _B_in["w1"],
        "B_b1": _B_in["b1"],
        "B_w2": _B_in["w2"],
        "B_b2": _B_in["b2"],
        "gate_w": _w((lambda *s: torch.randn(*s, dtype=torch.bfloat16) * 0.05)(640) * 16.0),
    }

def reference(A_u, A_A_re, A_A_im, A_B_re, A_B_im, A_C_re, A_C_im, A_log_dt, A_Dskip, B_x, B_w1, B_b1, B_w2, B_b2, gate_w):
    def _A_ref(u, A_re, A_im, B_re, B_im, C_re, C_im, log_dt, Dskip):
        Bsz, L, D = u.shape
        dt = torch.exp(log_dt)[:, None]
        A = A_re + 1j * A_im
        Bc = B_re + 1j * B_im
        Cc = C_re + 1j * C_im
        logdA = dt * A
        dB = dt * Bc
        l = (lambda x, dt: x.to(dt))(torch.arange(L), A_re.dtype)
        P = torch.exp(logdA[:, :, None] * l[None, None, :])
        K = torch.einsum("dn,dnl,dn->dl", Cc, P, dB).real
        L2 = 2 * L
        Kp = _pad(K, ((0, 0), (0, L)))
        up = (lambda x, *d: x.permute(*d))(u, 0, 2, 1)
        up = _pad(up, ((0, 0), (0, 0), (0, L)))
        Kf = (lambda x, axes=(-2,-1): torch.fft.rfft2(x.float(), dim=axes))(Kp[:, None, :], axes=(-2, -1))
        Uf = (lambda x, axes=(-2,-1): torch.fft.rfft2(x.float(), dim=axes))(up[:, :, None, :], axes=(-2, -1))
        Yf = Uf * Kf[None, :, :, :]
        y = (lambda x, s, axes=(-2,-1): torch.fft.irfft2(x, s=s, dim=axes).to(torch.bfloat16))(Yf, (1, L2), axes=(-2, -1))[:, :, 0, :L]
        y = (lambda x, *d: x.permute(*d))(y, 0, 2, 1) + u * Dskip[None, None, :]
        return y

    def _B_ref(x, w1, b1, w2, b2):
        h = torch.einsum("bsd,df->bsf", x, w1) + b1
        h = _gelu(h)
        return torch.einsum("bsf,fd->bsd", h, w2) + b2

    x = A_u
    g = _sigmoid((x * gate_w).sum(-1, keepdims=True))
    a = _A_ref(x, A_A_re, A_A_im, A_B_re, A_B_im, A_C_re, A_C_im, A_log_dt, A_Dskip)
    b = _B_ref(x, B_w1, B_b1, B_w2, B_b2)
    return g * a + (1 - g) * b
```

```python
import re
def vr(a, n=1): return f"v{a}" if n == 1 else f"v[{a}:{a+n-1}]"
def ar(a, n=1): return f"a{a}" if n == 1 else f"a[{a}:{a+n-1}]"
def sr(a, n=1): return f"s{a}" if n == 1 else f"s[{a}:{a+n-1}]"
TRANS = ("v_exp_f32", "v_log_f32", "v_rcp_f32", "v_rsq_f32", "v_sqrt_f32", "v_sin_f32", "v_cos_f32")
RE = re.compile(r"\b([vas])(?:(\d+)|\[(\d+):(\d+)\])")
def regs(tok):
    out = set()
    for m in RE.finditer(tok):
        k = m.group(1)
        if m.group(2) is not None: out.add((k, int(m.group(2))))
        else:
            for i in range(int(m.group(3)), int(m.group(4)) + 1): out.add((k, i))
    if re.search(r"\bvcc\b", tok): out.add(("s", "vcc"))
    if re.search(r"\bm0\b", tok): out.add(("s", "m0"))
    if re.search(r"\bexec\b", tok): out.add(("s", "exec"))
    return out
class I:
    __slots__ = ("t", "tag", "op", "cls", "dst", "src", "srcc", "wide")
    def __init__(self, t, tag=None):
        self.t = t; self.tag = tag
        p = t.split(None, 1); self.op = op = p[0]
        ops = [x.strip() for x in re.split(r",(?![^\[]*\])", p[1])] if len(p) > 1 else []
        self.dst = set(); self.src = set(); self.srcc = set(); self.wide = False
        if t.endswith(":") or op.startswith(".") : self.cls = "label"
        elif op.startswith("@"): self.cls = "pseudo"
        elif op.startswith("v_mfma"):
            self.cls = "mfma"; self.dst = regs(ops[0]); self.src = regs(ops[1]) | regs(ops[2]); self.srcc = regs(ops[3])
        elif op.startswith("v_"):
            self.cls = "trans" if op.replace("_e64", "").replace("_e32", "") in TRANS else "valu"
            self.dst = regs(ops[0])
            for o in ops[1:]: self.src |= regs(o)
            if op.startswith("v_permlane"): self.src |= self.dst; self.dst = self.dst | regs(ops[1])
            if op.startswith("v_writelane") or op.startswith("v_fmac") or op.startswith("v_pk_fmac"): self.src |= self.dst
        elif op.startswith("ds_"):
            self.cls = "ds"
            if op.startswith("ds_read") or op.startswith("ds_bperm"):
                self.dst = regs(ops[0])
                for o in ops[1:]: self.src |= regs(o)
            else:
                for o in ops: self.src |= regs(o)
        elif op.startswith("buffer_") or op.startswith("global_"):
            self.cls = "vmem"
            if "_load" in op and not re.search(r"\blds\b", t):
                self.dst = regs(ops[0])
                for o in ops[1:]: self.src |= regs(o)
            else:
                for o in ops: self.src |= regs(o)
                if re.search(r"\blds\b", t): self.src.add(("s", "m0"))
                if "store" in op and ("x4" in op or "x3" in op):
                    self.wide = regs(ops[0]) if op.startswith("buffer_") else regs(ops[1])
        elif op.startswith("s_load") or op.startswith("s_memrealtime") or op.startswith("s_memtime"):
            self.cls = "smem"; self.dst = regs(ops[0])
            for o in ops[1:]: self.src |= regs(o)
        elif op.startswith("s_"):
            self.cls = "salu"
            if ops and not op.startswith("s_cmp") and not op.startswith("s_cbranch") and not op.startswith("s_waitcnt") and not op.startswith("s_nop"):
                self.dst = regs(ops[0])
                for o in ops[1:]: self.src |= regs(o)
        else: raise ValueError(t)
class P:
    def __init__(self): self.l = []
    def __call__(self, s, tag=None):
        for x in s.split("\n"):
            x = x.split(";")[0].strip()
            if x: self.l.append(I(x, tag))
        return self
    def ext(self, o): self.l += (o.l if isinstance(o, P) else o); return self
    def wvm(self, tag): self.l.append(I(f"@wvm {tag}"))
    def wlg(self, tag): self.l.append(I(f"@wlg {tag}"))
def groups(p):
    return [[i] for i in p.l]
def weave(main, fill, start=0, step=1.0, per=1):
    out = []; k = 0; pos = start
    for i, m in enumerate(main):
        out.append(m)
        while k < len(fill) and i >= int(pos):
            for _ in range(per):
                if k < len(fill): out += fill[k]; k += 1
            pos += step
    while k < len(fill): out += fill[k]; k += 1
    return out
class St:
    def __init__(self): self.vm = []; self.lg = []; self.hist = []
    def copy(self):
        s = St(); s.vm = list(self.vm); s.lg = list(self.lg); s.hist = list(self.hist); return s
def need(h, c):
    n = 0
    hv = h.cls in ("valu", "trans")
    cv = c.cls in ("valu", "trans")
    if hv:
        vd = {r for r in h.dst if r[0] != "s"}; sd = {r for r in h.dst if r[0] == "s"}
        if c.cls == "mfma" and vd & (c.src | c.srcc): n = max(n, 2)
        if c.cls == "mfma" and ("s", "exec") in sd: n = max(n, 4)
        if h.cls == "trans" and cv and vd & c.src: n = max(n, 1)
        if (c.op.startswith("v_readfirstlane") or c.op.startswith("v_readlane")) and vd & c.src: n = max(n, 1)
        if c.op.startswith("v_permlane") and vd & c.src: n = max(n, 2)
        if "dpp" in c.t and vd & c.src: n = max(n, 2)
        if c.cls == "vmem" and sd & c.src: n = max(n, 5)
        if cv and sd & c.src: n = max(n, 4 if "lane" in c.op else 2)
        if cv and c.op.startswith("v_cndmask") and ("s", "vcc") in sd: n = max(n, 2)
    if h.cls == "mfma":
        if c.cls == "mfma":
            if h.dst & c.src: n = max(n, 8)
            if h.dst & c.srcc and h.dst != c.srcc: n = max(n, 6)
            if h.dst & c.dst and h.dst != c.srcc: n = max(n, 8)
        elif c.cls in ("valu", "trans", "vmem", "ds"):
            if h.dst & (c.src | c.dst): n = max(n, 8)
            if cv and h.srcc & c.dst: n = max(n, 3)
    if h.cls == "salu" and ("s", "m0") in h.dst and ("s", "m0") in c.src and c.cls in ("vmem", "ds"): n = max(n, 1)
    if h.cls == "vmem" and h.wide and (h.wide & c.dst): n = max(n, 2 if cv else 1)
    return n
def resolve(lst, st):
    out = []
    def emit(i):
        if i.cls not in ("label",):
            pad = 0; d = 0
            for h, w in reversed(st.hist):
                if d >= 9: break
                pad = max(pad, need(h, i) - d); d += w
            if pad > 0:
                nop = I(f"s_nop {pad-1}"); out.append(nop); st.hist.append((nop, pad))
            w = int(i.t.split()[1]) + 1 if i.op == "s_nop" else 1
            st.hist.append((i, w)); st.hist = st.hist[-12:]
        out.append(i)
    for i in lst:
        if i.cls == "pseudo":
            q = st.vm if i.op == "@wvm" else st.lg
            tag = i.t.split()[1]
            idx = max((k for k, t in enumerate(q) if t[0] == tag or tag == "*"), default=-1)
            if idx < 0: continue
            n = len(q) - 1 - idx
            if any(t[0] == "SMEM" for t in q): n = 0
            mx = 63 if i.op == "@wvm" else 15
            n = min(n, mx)
            del q[:len(q) - n]
            emit(I(f"s_waitcnt {'vmcnt' if i.op == '@wvm' else 'lgkmcnt'}({n})"))
            continue
        if i.op == "s_waitcnt":
            m = re.search(r"vmcnt\((\d+)\)", i.t)
            if m: del st.vm[:max(0, len(st.vm) - int(m.group(1)))]
            m = re.search(r"lgkmcnt\((\d+)\)", i.t)
            if m: del st.lg[:max(0, len(st.lg) - int(m.group(1)))]
        if i.cls != "label":
            used = i.src | i.dst | i.srcc
            for q in (st.vm, st.lg):
                for t in q:
                    if t[1] & used and not (i.cls in ("vmem",) and q is st.vm and not (t[1] & i.src)) and not (i.cls == "ds" and q is st.lg and not (t[1] & i.src)):
                        raise RuntimeError(f"pending load {t[0]} regs {sorted(t[1] & used, key=str)[:4]} used by: {i.t}")
        if i.cls == "vmem": st.vm.append((i.tag, i.dst))
        if i.cls == "ds": st.lg.append((i.tag, i.dst))
        if i.cls == "smem": st.lg.append(("SMEM", i.dst))
        emit(i)
    return out
def text(lst): return "".join(i.t + "\n" for i in lst)
```

```python
from fw import *
NAME = "gated_mix__ssm_conv_s4__dense_activation_gelu__prompt"
OPT = dict(ts=False, dbg="", DH=4)
HP, W2P, UT, APR, GBUF, FLG = 0, 0x700000, 0xA00000, 0xD00000, 0x1000000, 0x1010000
FLG_H, FLG_U, FLG_P, FLG_A = FLG, FLG + 0x1000, FLG + 0x2000, FLG + 0x3000
DBG = 0x1800000
WSREC = 0x2000000
OOB = 0x7ff00000
TS_OFF = 200 << 20
TAB, STG, RB, GW, RING = 0, 12288, 12288, 30720, 32768
UB, USTR = 32768, 4672
PART, CS = 53248, 16448
RED, AST = 86528, 147968
LDS = 163840
sWV = 3; sX = 4; sW = 8; sWS = 12; sT = 16; sN = 20
sRB = 22; sCT = 23; sPAIR = 24; sRT = 25; sC2 = 26; sCH = 27; sOX = 28; sOW = 29; sA = 30; sB = 31
sK1 = 32; sK0 = 34; sKA = 36
pU, pAre, pLdt, pDsk, pW1, pB1, pW2, pB2, pGw, pOut, pDbg, pWs = 36, 38, 50, 52, 56, 58, 60, 62, 64, 66, 68, 70
sWO = 72; sHO = 86; sSPIN = 100; sC = 101
sLD = 0
vL, vN, vG = 1, 2, 3
vP1 = 4
vNON = 10
vDX, vDW = 16, 20
vP0 = 36
vW2a, vW2b, vH = 56, 57, 58
vGv, vF0 = 62, 63
vTS = 230
_uid = [0]
def lab(b):
    _uid[0] += 1; return f"{b}{_uid[0]}"
SLOW = []
def ts(p, slot):
    if not OPT["ts"]: return
    p(f"s_memrealtime s[{sA}:{sA+1}]\ns_waitcnt lgkmcnt(0)\nv_writelane_b32 v{vTS}, s{sA}, {slot}\nv_writelane_b32 v{vTS+1}, s{sA+1}, {slot}")
def w2reg(u): return ar(4*u, 4) if u < 64 else vr(232 + 4*(u-64), 4)
def w2loads(lo, hi):
    g = []
    for u in range(lo, hi):
        j, db = divmod(u, 5)
        if db < 4: g.append([I(f"buffer_load_dwordx4 {w2reg(u)}, v{vW2a}, s[{sWS}:{sWS+3}], s{sWO+j} offen offset:{db*1024} sc1", f"w2_{j}")])
        else: g.append([I(f"buffer_load_dwordx4 {w2reg(u)}, v{vW2b}, s[{sWS}:{sWS+3}], s{sWO+j} offen sc1", f"w2_{j}")])
    return g
def poll_issue(p, vdst, vaddr, tag):
    p(f"buffer_load_dwordx2 v[{vdst}:{vdst+1}], v{vaddr}, s[{sWS}:{sWS+3}], 0 offen sc1", tag)
def poll_check(p, vdst, vaddr, tag):
    ls, lb = lab("slow"), lab("back")
    p.wvm(tag)
    p(f"v_cmp_ne_u64 vcc, v[{vdst}:{vdst+1}], s[{sN}:{sN+1}]\ns_cbranch_vccnz {ls}\n{lb}:")
    SLOW.append(f"""{ls}:
s_mov_b32 s{sSPIN}, 0
{ls}l:
buffer_load_dwordx2 v[{vdst}:{vdst+1}], v{vaddr}, s[{sWS}:{sWS+3}], 0 offen sc1
s_add_u32 s{sSPIN}, s{sSPIN}, 1
s_cmp_ge_u32 s{sSPIN}, 0x8000
s_cbranch_scc1 {ls}x
s_waitcnt vmcnt(0)
v_cmp_ne_u64 vcc, v[{vdst}:{vdst+1}], s[{sN}:{sN+1}]
s_cbranch_vccnz {ls}l
{ls}x:
s_waitcnt vmcnt(0)
s_branch {lb}
""")
def flag_store(p, sreg):
    p(f"buffer_store_dwordx2 v[{vNON}:{vNON+1}], v{vF0}, s[{sWS}:{sWS+3}], s{sreg} offen sc1", "flag")
def mod10(p, d, s, t):
    p(f"s_mul_i32 s{t}, s{s}, 6554\ns_lshr_b32 s{t}, s{t}, 16\ns_mul_i32 s{t}, s{t}, 10\ns_sub_u32 s{d}, s{s}, s{t}")
def srd(p, d, ptr, n):
    p(f"s_mov_b32 s{d}, s{ptr}\ns_mov_b32 s{d+1}, s{ptr+1}\ns_mov_b32 s{d+2}, {n}\ns_mov_b32 s{d+3}, 0x20000")

def entry():
    p = P()
    p(f"""s_cmp_ge_u32 s2, 256
    s_cbranch_scc1 L_end
    s_load_dwordx16 s[36:51], s[0:1], 0
    s_load_dwordx16 s[52:67], s[0:1], 64
    s_load_dwordx4 s[68:71], s[0:1], 128""")
    p(f"s_memrealtime s[{sK1}:{sK1+1}]")
    p(f"""v_lshrrev_b32 v4, 6, v0
    v_and_b32 v{vL}, 63, v0
    v_readfirstlane_b32 s{sWV}, v4
    v_and_b32 v{vN}, 15, v0
    v_bfe_u32 v{vG}, v0, 4, 2
    s_and_b32 s{sA}, s2, 7
    s_lshr_b32 s{sB}, s2, 3
    s_lshr_b32 s{sOX}, s{sA}, 1
    s_and_b32 s{sOW}, s{sA}, 1
    s_lshl_b32 s{sRT}, s{sOX}, 3
    s_lshr_b32 s{sC}, s{sB}, 2
    s_add_u32 s{sRT}, s{sRT}, s{sC}
    s_lshl_b32 s{sC2}, s{sOW}, 2
    s_and_b32 s{sC}, s{sB}, 3
    s_add_u32 s{sC2}, s{sC2}, s{sC}
    s_cmp_ge_u32 s{sB}, 30
    s_cbranch_scc1 L_C
    s_cmp_ge_u32 s{sB}, 24
    s_cbranch_scc1 L_B""")
    return p
def prefetch_code(p, role):
    l = lab("pc")
    p(f"""s_getpc_b64 s[{sN}:{sN+1}]
    {l}:
    v_lshlrev_b32 v4, 7, v0
    v_min_u32 v4, L_{role}_end-{l}-4, v4
    global_load_dword v229, v4, s[{sN}:{sN+1}]""", "pf")
def params_issue(p, role):
    p(f"""s_lshl_b32 s{sC}, s{sPAIR}, 9
    v_lshlrev_b32 v5, 1, v0
    v_add_u32 v12, s{sC}, v5
    s_lshl_b32 s{sC}, s{sPAIR}, 2
    s_waitcnt lgkmcnt(0)""")
    if OPT["ts"]: p(f"v_writelane_b32 v{vTS}, s{sK1}, 0\nv_writelane_b32 v{vTS+1}, s{sK1+1}, 0")
    if role == "A": nonce_pub(p)
    for i in range(6): p(f"global_load_ushort v{vP0+i}, v12, s[{pAre+2*i}:{pAre+2*i+1}]", "par0")
    if role != "A":
        for i in range(6): p(f"global_load_ushort v{vP1+i}, v12, s[{pAre+2*i}:{pAre+2*i+1}] offset:512", "par1")
    p(f"""s_add_u32 s{pLdt}, s{pLdt}, s{sC}
    s_addc_u32 s{pLdt+1}, s{pLdt+1}, 0
    s_add_u32 s{pDsk}, s{pDsk}, s{sC}
    s_addc_u32 s{pDsk+1}, s{pDsk+1}, 0""")
    if role == "A":
        p(f"s_load_dword s0, s[{pLdt}:{pLdt+1}], 0\ns_load_dword s54, s[{pDsk}:{pDsk+1}], 0")
    else:
        p(f"s_load_dwordx2 s[0:1], s[{pLdt}:{pLdt+1}], 0\ns_load_dwordx2 s[54:55], s[{pDsk}:{pDsk+1}], 0")
    srd(p, sWS, pWs, WSREC)
def nonce_pub(p):
    l = lab("np")
    p(f"""s_or_b32 s{sSPIN}, s2, s{sWV}
    s_cmp_lg_u32 s{sSPIN}, 0
    s_cbranch_scc1 {l}
    v_mov_b32 v13, 0
    s_or_b32 s{sK1+1}, s{sK1+1}, 0x40000000
    v_mov_b32 v14, s{sK1}
    v_mov_b32 v15, s{sK1+1}
    s_mov_b64 exec, 1
    global_store_dwordx2 v13, v[14:15], s[{pDbg}:{pDbg+1}] sc1
    s_mov_b64 exec, -1
    {l}:""")
def nonce_issue(p):
    p(f"v_mov_b32 v13, 0\nglobal_load_dwordx2 v[{vNON}:{vNON+1}], v13, s[{pDbg}:{pDbg+1}] sc1", "non")
def nonce_check(p):
    ls, lb = lab("slow"), lab("back")
    p.wvm("non")
    p(f"""v_readfirstlane_b32 s{sN+1}, v{vNON+1}
    v_readfirstlane_b32 s{sN}, v{vNON}
    s_cmp_eq_u32 s{sN+1}, 0
    s_cbranch_scc1 {ls}
    {lb}:""")
    SLOW.append(f"""{ls}:
s_mov_b32 s{sSPIN}, 0
v_mov_b32 v13, 0
{ls}l:
global_load_dwordx2 v[{vNON}:{vNON+1}], v13, s[{pDbg}:{pDbg+1}] sc1
s_add_u32 s{sSPIN}, s{sSPIN}, 1
s_waitcnt vmcnt(0)
v_readfirstlane_b32 s{sN+1}, v{vNON+1}
v_readfirstlane_b32 s{sN}, v{vNON}
s_cmp_ge_u32 s{sSPIN}, 0x8000
s_cbranch_scc1 {ls}x
s_cmp_eq_u32 s{sN+1}, 0
s_cbranch_scc1 {ls}l
{ls}x:
s_nop 4
s_branch {lb}
""")
def g2_offsets():
    p = P()
    p(f"""s_and_b32 s42, s{sB}, 3
    s_mul_i32 s42, s42, 3
    s_lshr_b32 s43, s{sB}, 2
    s_mul_i32 s43, s43, 5
    s_add_u32 s42, s42, s43
    s_mul_i32 s43, s42, 5042
    s_lshr_b32 s43, s43, 16
    s_mul_i32 s43, s43, 13
    s_sub_u32 s42, s42, s43
    s_mul_i32 s43, s{sWV}, 14
    s_cmp_eq_u32 s{sWV}, 3
    s_cselect_b32 s44, 1, 0
    s_sub_u32 s43, s43, s44
    s_cmp_lt_u32 s{sWV}, 2
    s_cselect_b32 s44, 14, 13
    s_add_u32 s44, s44, s43
    s_add_u32 s42, s42, s43
    s_mul_i32 s45, s{sC2}, {54*5120}
    s_add_u32 s45, s45, {W2P}
    s_mul_i32 s46, s{sRT}, {54*4096}""")
    for j in range(14):
        p(f"""s_mul_i32 s{sWO+j}, s42, 5120
        s_add_u32 s{sWO+j}, s{sWO+j}, s45
        s_lshl_b32 s{sHO+j}, s42, 12
        s_add_u32 s{sHO+j}, s{sHO+j}, s46""")
        if j < 13: p(f"s_add_u32 s42, s42, 1\ns_cmp_eq_u32 s42, s44\ns_cselect_b32 s42, s43, s42")
    p(f"""s_cmp_lt_u32 s{sWV}, 2
    s_cselect_b32 s{sWO+13}, s{sWO+13}, {OOB}
    s_cselect_b32 s{sHO+13}, s{sHO+13}, {OOB}""")
    return p
def common_v():
    p = P()
    p(f"""v_cmp_eq_u32 vcc, 0, v0
    v_mov_b32 v{vF0}, {OOB}
    v_lshlrev_b32 v{vW2a}, 4, v{vL}
    v_cndmask_b32 v{vF0}, v{vF0}, 0, vcc
    v_add_u32 v{vW2b}, 4096, v{vW2a}""")
    for s in range(4):
        p(f"s_xor_b32 s{sC}, s{sWV}, {s}\ns_lshl_b32 s{sC}, s{sC}, 10\nv_add_u32 v{vH+s}, s{sC}, v{vW2a}")
    return p

def cmul(p, d, a, b):
    p(f"v_pk_mul_f32 v[{d}:{d+1}], v[{a}:{a+1}], v[{b}:{b+1}] op_sel:[0,0] op_sel_hi:[0,1]")
    p(f"v_pk_fma_f32 v[{d}:{d+1}], v[{a}:{a+1}], v[{b}:{b+1}], v[{d}:{d+1}] op_sel:[1,1,0] op_sel_hi:[1,0,1] neg_lo:[1,0,0]")
def kgen(par, sld, sdsk, fill, fstart=10, fstep=30, pre_bar=None, post_bar=None):
    p = P()
    E = 64
    F = 80
    Bc, E8, W = 112, 116, 118
    AL, BE, DT, T0, T1, T2, T3 = 120, 121, 122, 123, 124, 125, 126
    CV = 128
    TM = 136
    BF, AF, ACC = 144, 160, 176
    vSW, vSR, vA0, vA1, vA2, vA3 = 188, 189, 190, 191, 224, 225
    Ek = lambda k: E + 2*(k-1)
    Fk = lambda k: F + 2*(k-1)
    p(f"""s_lshr_b32 s{sC}, s{sWV}, 1
    s_lshl_b32 s{sC}, s{sC}, 4
    s_lshr_b32 s{sld}, s{sld}, s{sC}
    s_lshl_b32 s{sld}, s{sld}, 16
    s_lshr_b32 s{sdsk}, s{sdsk}, s{sC}
    s_lshl_b32 s{sdsk}, s{sdsk}, 16
    v_mov_b32 v{DT}, 0x3fb8aa3b
    v_mul_f32 v{DT}, s{sld}, v{DT}
    s_mul_i32 s{sC}, s{sWV}, 4608
    v_exp_f32 v{DT}, v{DT}
    s_add_u32 s{sC}, s{sC}, {STG}
    v_lshl_add_u32 v{vSW}, v{vL}, 2, s{sC}
    v_cvt_pk_bf16_f32 v{DT}, v{DT}, v{DT}
    v_mul_u32_u24 v{vSR}, 288, v{vN}
    v_lshlrev_b32 v{DT}, 16, v{DT}
    v_lshl_add_u32 v{vSR}, v{vG}, 4, v{vSR}
    v_add_u32 v{vSR}, s{sC}, v{vSR}""")
    p.wvm("par0"); p.wvm("par1")
    for i in range(6): p(f"v_lshlrev_b32 v{par+i}, 16, v{par+i}")
    p(f"""v_mul_f32 v{AL}, v{DT}, v{par}
    v_mul_f32 v{BE}, v{DT}, v{par+1}
    v_mul_f32 v{AL}, 0x3fb8aa3b, v{AL}
    v_mul_f32 v{BE}, 0x3e22f983, v{BE}
    v_mul_f32 v{T0}, 0x41000000, v{AL}
    v_mul_f32 v{T1}, 0xc1000000, v{BE}
    v_exp_f32 v{T0}, v{T0}
    v_fract_f32 v{T1}, v{T1}
    v_mul_f32 v{par+2}, v{DT}, v{par+2}
    v_cos_f32 v{E8}, v{T1}
    v_sin_f32 v{E8+1}, v{T1}
    v_mul_f32 v{par+3}, v{DT}, v{par+3}
    v_pk_mul_f32 v[{E8}:{E8+1}], v[{E8}:{E8+1}], v[{T0-1}:{T0}] op_sel:[0,1] op_sel_hi:[1,1]""")
    p(f"""v_mul_f32 v{Bc}, v{par+4}, v{par+2}
    v_mul_f32 v{Bc+1}, v{par+4}, v{par+3}
    v_fma_f32 v{Bc}, -v{par+5}, v{par+3}, v{Bc}
    v_fma_f32 v{Bc+1}, -v{par+5}, v{par+2}, -v{Bc+1}""")
    cvi = [0]
    def put(row, reg):
        c = CV + cvi[0] % 8; cvi[0] += 1
        p(f"v_cvt_pk_bf16_f32 v{c}, v{reg}, v{reg+1}")
        p(f"ds_write_b32 v{vSW}, v{c} offset:{row*288}", "stw")
    def expk(d, k):
        q = P()
        q(f"""v_mul_f32 v{T2}, {k}, v{AL}
        v_mul_f32 v{T3}, {k}, v{BE}
        v_exp_f32 v{T2}, v{T2}
        v_fract_f32 v{T3}, v{T3}
        v_cos_f32 v{d}, v{T3}
        v_sin_f32 v{d+1}, v{T3}
        s_nop 0
        v_pk_mul_f32 v[{d}:{d+1}], v[{d}:{d+1}], v[{T2-1}:{T2}] op_sel:[0,1] op_sel_hi:[1,1]""")
        return q
    assert T0 % 2 == 1 and T2 % 2 == 1
    cur = Bc
    for j in range(16):
        put(j, cur)
        if j < 15:
            nx = Bc + 2 if cur == Bc else Bc
            cmul(p, nx, cur, E8); cur = nx
    for ks in range(4): p(f"ds_read_b128 v[{BF+4*ks}:{BF+4*ks+3}], v{vSR} offset:{64*ks}", "bf")
    p.ext(expk(Ek(1), "1.0")); p.ext(expk(Fk(1), "0x43000000"))
    p(f"v_mov_b32 v{CV+7}, 0x3f80"); p(f"ds_write_b32 v{vSW}, v{CV+7}", "stw")
    put(1, Ek(1)); put(8, Fk(1))
    for k, (a, b) in {2: (1, 1), 3: (2, 1), 4: (2, 2), 5: (4, 1), 6: (4, 2), 7: (4, 3)}.items():
        cmul(p, Ek(k), Ek(a), Ek(b)); put(k, Ek(k))
    tm = [0]
    def prod(row, a, b):
        t = TM + 2*(tm[0] % 4); tm[0] += 1
        cmul(p, t, a, b); put(row, t)
    for k in range(1, 8): prod(8 + k, Fk(1), Ek(k))
    def rdA():
        for ks in range(4): p(f"ds_read_b128 v[{AF+4*ks}:{AF+4*ks+3}], v{vSR} offset:{64*ks}", "af")
    def mm(blk):
        p.wlg("af")
        for ks in range(4):
            p(f"v_mfma_f32_16x16x32_bf16 v[{ACC+4*blk}:{ACC+4*blk+3}], v[{AF+4*ks}:{AF+4*ks+3}], v[{BF+4*ks}:{BF+4*ks+3}], " + ("0" if ks == 0 else f"v[{ACC+4*blk}:{ACC+4*blk+3}]"))
    rdA()
    for k, (a, b) in {2: (1, 1), 3: (2, 1), 4: (2, 2), 5: (4, 1), 6: (4, 2), 7: (4, 3), 8: (4, 4)}.items(): cmul(p, Fk(k), Fk(a), Fk(b))
    mm(0)
    for i, f in enumerate((2, 3)):
        put(4*i, Fk(f))
        for u, e in enumerate((2, 4, 6)): prod(4*i + 1 + u, Fk(f), Ek(e))
    for i, f in enumerate((4, 5, 6, 7)):
        put(8 + 2*i, Fk(f)); prod(9 + 2*i, Fk(f), Ek(4))
    rdA()
    for k in range(9, 17): cmul(p, Fk(k), Fk(8), Fk(k-8))
    mm(1)
    for k in range(8, 17): put(k - 8, Fk(k))
    rdA()
    p(f"""s_mul_i32 s{sC}, s{sWV}, 3072
    v_lshrrev_b32 v{T0}, 1, v{vG}
    v_and_b32 v{T1}, 1, v{vG}
    v_lshlrev_b32 v{vA0}, 9, v{T0}
    v_lshl_add_u32 v{vA0}, v{vN}, 5, v{vA0}
    v_lshl_add_u32 v{vA0}, v{T1}, 4, v{vA0}
    v_add_u32 v{vA0}, s{sC}, v{vA0}
    v_sub_u32 v{T1}, 4, v{T0}
    v_lshlrev_b32 v{vA1}, v{T1}, v{vN}
    v_lshl_add_u32 v{vA3}, v{vG}, 8, s{sC}
    v_add_u32 v{vA1}, v{vA1}, v{vA3}
    v_mul_u32_u24 v{T0}, 120, v{T0}
    v_add3_u32 v{vA2}, v{vA1}, v{T0}, 8
    v_lshl_add_u32 v{vA3}, v{vN}, 2, v{vA3}""")
    mm(2)
    p(f"ds_write_b128 v{vA0}, v[{ACC}:{ACC+3}]", "tw")
    p(f"ds_write_b64 v{vA1}, v[{ACC+4}:{ACC+5}] offset:1024", "tw")
    p(f"ds_write_b64 v{vA2}, v[{ACC+6}:{ACC+7}] offset:1024", "tw")
    for i in range(4): p(f"ds_write_b32 v{vA3}, v{ACC+8+i} offset:{2048+64*i}", "tw")
    body = weave(p.l, fill, fstart + 30, fstep)
    p = P(); p.ext(body)
    vT, vR, X, Y, Z, O = 64, 65, 66, 68, 76, 84
    X2, Y2, Z2 = 67, 72, 80
    vA, vBb = 92, 93
    p(f"""s_lshr_b32 s{sC}, s{sWV}, 1
    s_mul_i32 s{sSPIN}, s{sC}, 6144
    s_mul_i32 s{sC}, s{sC}, 8320
    s_add_u32 s{sC}, s{sC}, {RB + 4080}
    v_lshlrev_b32 v{vR}, 4, v{vL}
    v_sub_u32 v{vR}, s{sC}, v{vR}
    s_and_b32 s{sC}, s{sWV}, 1
    s_lshl_b32 s{sC}, s{sC}, 8
    s_add_u32 s{sC}, s{sC}, s{sSPIN}
    v_lshl_add_u32 v{vT}, v{vL}, 2, s{sC}""")
    if pre_bar: p.ext(pre_bar)
    p("s_waitcnt lgkmcnt(0)\ns_barrier")
    if post_bar: p.ext(post_bar)
    S0, S1, S2, S3 = 94, 95, 96, 97
    p(f"ds_read_b32 v{S0}, v{vT} offset:2048\nds_read_b32 v{S1}, v{vT} offset:2052\nds_read_b32 v{S2}, v{vT} offset:{2048+3072}\nds_read_b32 v{S3}, v{vT} offset:{2052+3072}", "s3")
    l1, l2 = lab("ex"), lab("ex")
    p(f"s_bitcmp1_b32 s{sWV}, 0\ns_cbranch_scc1 {l1}")
    p(f"""v_cmp_gt_u32 vcc, 32, v{vL}
    v_lshlrev_b32 v{vA}, 5, v{vL}
    v_lshl_add_u32 v{vBb}, v{vL}, 4, 0x200
    v_cndmask_b32 v{vBb}, v{vBb}, v{vA}, vcc
    v_cmp_ge_u32 vcc, 32, v{vL}
    v_add_u32 v{vA}, -4, v{vA}
    v_max_i32 v{vA}, 0, v{vA}
    v_cndmask_b32 v{vA}, v{vBb}, v{vA}, vcc
    v_add_u32 v{vBb}, s{sSPIN}, v{vBb}
    v_add_u32 v{vA}, s{sSPIN}, v{vA}""".replace("4, 0x200", f"4, s{sA}").replace(f"v_cmp_gt_u32 vcc, 32, v{vL}", f"s_movk_i32 s{sA}, 0x200\nv_cmp_gt_u32 vcc, 32, v{vL}"))
    p(f"""ds_read_b128 v[{Y}:{Y+3}], v{vBb}
    ds_read_b128 v[{Y2}:{Y2+3}], v{vBb} offset:3072
    ds_read_b128 v[{Z}:{Z+3}], v{vBb} offset:16
    ds_read_b128 v[{Z2}:{Z2+3}], v{vBb} offset:3088
    ds_read_b32 v{X}, v{vA}
    ds_read_b32 v{X2}, v{vA} offset:3072""", "p0")
    p(f"""v_cmp_eq_u32 vcc, 0, v{vL}
    v_mov_b32 v{vA}, s{sdsk}
    s_mov_b32 s{sA}, 0
    s_mov_b32 s{sA+1}, -1
    v_cndmask_b32 v{vA}, 0, v{vA}, vcc
    s_waitcnt lgkmcnt(0)
    v_pk_add_f32 v[{Y}:{Y+1}], v[{Y}:{Y+1}], v[{Y2}:{Y2+1}]
    v_pk_add_f32 v[{Y+2}:{Y+3}], v[{Y+2}:{Y+3}], v[{Y2+2}:{Y2+3}]
    v_pk_add_f32 v[{Z}:{Z+1}], v[{Z}:{Z+1}], v[{Z2}:{Z2+1}]
    v_pk_add_f32 v[{Z+2}:{Z+3}], v[{Z+2}:{Z+3}], v[{Z2+2}:{Z2+3}]
    v_add_f32 v{X}, v{X}, v{X2}
    v_cndmask_b32 v{X}, v{X}, 0, vcc""")
    D = [Y, Y2, Y2+1, Y2+2, Y2+3, Z2, Z2+1, Z2+2]
    s0 = [None, Y+1, Y+2, Y+3, Z, Z+1, Z+2, Z+3]; s1 = [None, Y, Y+1, Y+2, Y+2, Y+2, Y+3, Z]
    for k in range(1, 8): p(f"v_cndmask_b32 v{D[k]}, v{s0[k]}, v{s1[k]}, s[{sA}:{sA+1}]")
    p(f"v_add_f32 v{Y}, v{Y}, v{vA}")
    def packs(d, dm1):
        for i in range(4): p(f"v_cvt_pk_bf16_f32 v{O+i}, v{d[7-2*i]}, v{d[6-2*i]}")
        for i in range(4): p(f"v_cvt_pk_bf16_f32 v{O+4+i}, v{d[6-2*i]}, v{d[5-2*i] if i < 3 else dm1}")
    packs(D, X)
    p(f"ds_write_b128 v{vR}, v[{O}:{O+3}]\nds_write_b128 v{vR}, v[{O+4}:{O+7}] offset:4160\nv_add_u32 v{vR}, -2048, v{vR}\ns_branch {l2}\n{l1}:")
    p(f"v_lshl_add_u32 v{vA}, v{vL}, 3, s{sSPIN}")
    p(f"""ds_read_b64 v[{Y}:{Y+1}], v{vA} offset:1536
    ds_read_b64 v[{Y2}:{Y2+1}], v{vA} offset:{1536+3072}
    ds_read_b32 v{Y+2}, v{vA} offset:1544
    ds_read_b32 v{Y2+2}, v{vA} offset:{1544+3072}""", "p1")
    p(f"""v_and_b32 v{vBb}, 1, v{vL}
    v_bfe_u32 v{X}, v{vL}, 1, 1
    v_mul_u32_u24 v{vBb}, 4160, v{vBb}
    s_lshr_b32 s{sC}, s{sWV}, 1
    s_mul_i32 s{sC}, s{sC}, 8320
    v_lshl_add_u32 v{vBb}, v{X}, 4, v{vBb}
    v_mov_b32 v{Z}, 0
    v_mov_b32 v{Z+1}, 0
    v_mov_b32 v{Z+2}, 0
    v_mov_b32 v{Z+3}, 0
    v_add_u32 v{vBb}, s{sC}, v{vBb}
    v_add_u32 v{vR}, -1024, v{vR}
    ds_write_b128 v{vBb}, v[{Z}:{Z+3}] offset:{RB+4096}
    s_waitcnt lgkmcnt(0)
    v_pk_add_f32 v[{Y}:{Y+1}], v[{Y}:{Y+1}], v[{Y2}:{Y2+1}]
    v_add_f32 v{Y+2}, v{Y+2}, v{Y2+2}""")
    packs([Y, Y, Y, Y+1, Y+1, Y+1, Y+2, Y+2], Y)
    p(f"ds_write_b128 v{vR}, v[{O}:{O+3}]\nds_write_b128 v{vR}, v[{O+4}:{O+7}] offset:4160\nv_add_u32 v{vR}, -2048, v{vR}\n{l2}:")
    p(f"""v_and_b32 v{X}, 1, v{vL}
    v_add_f32 v{S0}, v{S0}, v{S2}
    v_cmp_eq_u32 vcc, 1, v{X}
    v_add_f32 v{S1}, v{S1}, v{S3}
    s_nop 0
    v_cndmask_b32 v{S2}, v{S0}, v{S1}, vcc""")
    O = 98
    packs([S0, S0, S0, S0, S2, S1, S1, S1], S0)
    p(f"ds_write_b128 v{vR}, v[{O}:{O+3}]\nds_write_b128 v{vR}, v[{O+4}:{O+7}] offset:4160", "rw")
    return p
```

```python
from gen1 import *
sMX, sMW, sGC, sUS, sT1, sT2 = 47, 48, 49, 50, 51, 52
ACC1 = 64; FX = (128, 160); FW = (144, 176); BIAS = 192; GACC = 208; GF = (224, 4)
vXA, vWA = 24, 28
def dma_x(step):
    g = [I(f"s_add_u32 m0, s{sMX}, {(step & 3)*32768}")]
    for i in range(4): g.append(I(f"buffer_load_dwordx4 v{vDX+i}, s[{sX}:{sX+3}], s{sOX} offen offset:{i*1024} lds", f"st{step}"))
    return g
def dma_w(step, nw):
    g = [I(f"s_add_u32 m0, s{sMW}, {(step & 3)*32768}")]
    for i in range(nw): g.append(I(f"buffer_load_dwordx4 v{vDW+i}, s[{sW}:{sW+3}], s{sOW} offen offset:{i*1024} lds", f"st{step}"))
    g += P()(f"""s_add_u32 s{sCH}, s{sCH}, 1
    s_cmp_eq_u32 s{sCH}, 10
    s_cselect_b32 s{sCH}, 0, s{sCH}
    s_lshl_b32 s{sOX}, s{sCH}, 7
    s_mul_i32 s{sOW}, s{sCH}, 221184""").l
    return g
def g1_setup(role):
    p = P(); nw = 4 if role == "A" else 2
    srd(p, sX, pU, 2048*1280); srd(p, sW, pW1, 640*3456)
    p(f"""s_lshl_b32 s{sOX}, s{sCH}, 7
    s_mul_i32 s{sOW}, s{sCH}, 221184
    s_lshl_b32 s{sMX}, s{sWV}, 12
    s_add_u32 s{sMX}, s{sMX}, {RING}
    s_lshl_b32 s{sMW}, s{sWV}, {12 if role == "A" else 11}
    s_add_u32 s{sMW}, s{sMW}, {RING + 16384}
    s_lshl_b32 s{sC}, s{sRB}, 2
    s_add_u32 s{sC}, s{sC}, s{sWV}
    s_mul_i32 s{sC}, s{sC}, {32*1280}
    v_lshrrev_b32 v64, 3, v{vL}
    v_and_b32 v65, 7, v{vL}
    v_xor_b32 v66, v64, v65
    v_mul_u32_u24 v67, 1280, v64
    v_lshl_add_u32 v67, v66, 4, v67
    v_add_u32 v{vDX}, s{sC}, v67""")
    for i in range(1, 4): p(f"v_add_u32 v{vDX+i}, {i*9216}, v{vDX}")
    p(f"s_mul_i32 s{sC}, s{sWV}, {16*3456}")
    if role == "A":
        p(f"""s_lshl_b32 s{sSPIN}, s{sCT}, 8
        s_add_u32 s{sC}, s{sC}, s{sSPIN}
        v_mul_u32_u24 v67, 3456, v{vG}
        v_and_b32 v64, 1, v{vL}
        v_lshl_add_u32 v67, v64, 4, v67
        v_add_u32 v67, s{sC}, v67
        v_lshrrev_b32 v65, 1, v{vN}
        v_xor_b32 v65, v65, v{vG}
        v_xor_b32 v66, 4, v65
        v_lshl_add_u32 v{vDW}, v65, 5, v67
        v_lshl_add_u32 v{vDW+2}, v66, 5, v67
        v_add_u32 v{vDW+1}, {4*3456-1024}, v{vDW}
        v_add_u32 v{vDW+3}, {3*(4*3456-1024)}, v{vDW+2}
        v_add_u32 v{vDW+2}, {2*(4*3456-1024)}, v{vDW+2}""")
    else:
        p(f"""s_lshl_b32 s{sSPIN}, s{sCT}, 7
        s_add_u32 s{sC}, s{sC}, s{sSPIN}
        s_add_u32 s{sC}, s{sC}, 3072
        v_mul_u32_u24 v67, 3456, v64
        v_and_b32 v64, 1, v{vL}
        v_lshl_add_u32 v67, v64, 4, v67
        v_add_u32 v67, s{sC}, v67
        v_lshrrev_b32 v65, 1, v65
        v_and_b32 v64, 1, v{vG}
        v_xor_b32 v65, v65, v64
        v_xor_b32 v66, 2, v65
        v_lshl_add_u32 v{vDW}, v65, 5, v67
        v_lshl_add_u32 v{vDW+1}, v66, 5, v67
        v_add_u32 v{vDW+1}, {8*3456-1024}, v{vDW+1}""")
    return p
def g1_bias_issue(role):
    p = P(); nfb = 4 if role == "A" else 2
    if role == "A": p(f"s_lshl_b32 s{sC}, s{sCT}, 8\ns_and_b32 s{sSPIN}, s{sWV}, 1\ns_lshl_b32 s{sSPIN}, s{sSPIN}, 7\ns_add_u32 s{sC}, s{sC}, s{sSPIN}")
    else: p(f"s_lshl_b32 s{sC}, s{sCT}, 7\ns_and_b32 s{sSPIN}, s{sWV}, 1\ns_lshl_b32 s{sSPIN}, s{sSPIN}, 6\ns_add_u32 s{sC}, s{sC}, s{sSPIN}\ns_add_u32 s{sC}, s{sC}, 3072")
    p(f"v_lshl_add_u32 v64, v{vG}, 3, s{sC}")
    for fb in range(nfb): p(f"global_load_dwordx2 v[{BIAS+8+2*fb}:{BIAS+9+2*fb}], v64, s[{pB1}:{pB1+1}] offset:{32*fb}", "bias")
    if role == "A":
        srd(p, sT, pGw, 1280)
        p(f"""s_and_b32 s{sC}, s{sWV}, 1
        s_lshl_b32 s{sC}, s{sC}, 10
        s_add_u32 m0, s{sC}, {GW}
        v_lshlrev_b32 v65, 4, v{vL}""")
        p(f"buffer_load_dwordx4 v65, s[{sT}:{sT+3}], s{sC} offen lds", "st0")
    return p
def unpack(p, dst, raw, n):
    for i in range(n):
        p(f"""v_lshlrev_b32 v{dst+4*i}, 16, v{raw+2*i}
        v_and_b32 v{dst+4*i+1}, 0xffff0000, v{raw+2*i}
        v_lshlrev_b32 v{dst+4*i+2}, 16, v{raw+2*i+1}
        v_and_b32 v{dst+4*i+3}, 0xffff0000, v{raw+2*i+1}""")
def g1_addr(role):
    p = P(); nfb = 4 if role == "A" else 2
    p.wvm("bias")
    unpack(p, BIAS, BIAS + 8, nfb)
    p(f"""s_lshr_b32 s{sC}, s{sWV}, 1
    s_lshl_b32 s{sC}, s{sC}, 13
    s_add_u32 s{sC}, s{sC}, {RING}
    v_and_b32 v64, 7, v{vN}
    v_xor_b32 v64, v64, v{vG}
    v_lshl_add_u32 v65, v{vN}, 7, s{sC}
    v_lshl_add_u32 v{vXA}, v64, 4, v65
    v_xor_b32 v{vXA+1}, 64, v{vXA}
    v_add_u32 v{vXA+2}, 0x10000, v{vXA}
    v_add_u32 v{vXA+3}, 0x10000, v{vXA+1}
    v_bfe_u32 v66, v{vL}, 2, 2
    v_and_b32 v67, 3, v{vL}
    v_and_b32 v68, 1, v{vG}
    v_lshl_add_u32 v69, v{vG}, 3, v66
    s_and_b32 s{sC}, s{sWV}, 1""")
    if role == "A":
        p(f"""v_lshl_or_b32 v70, v68, 2, v66
        s_lshl_b32 s{sC}, s{sC}, 2
        v_lshlrev_b32 v69, 8, v69""")
    else:
        p(f"""v_lshrrev_b32 v70, 1, v66
        v_lshl_or_b32 v70, v68, 1, v70
        s_lshl_b32 s{sC}, s{sC}, 1
        v_lshlrev_b32 v69, 7, v69""")
    p(f"""v_xor_b32 v70, s{sC}, v70
    v_lshl_add_u32 v69, v67, 3, v69
    v_add_u32 v69, {RING+16384}, v69""")
    for fb in range(nfb):
        p(f"v_xor_b32 v71, {fb}, v70\nv_lshl_add_u32 v{vWA+fb}, v71, 5, v69\nv_add_u32 v{vWA+4+fb}, 0x10000, v{vWA+fb}")
    if role == "A":
        p(f"""s_lshl_b32 s{sC}, s{sWV}, 12
        s_add_u32 s{sC}, s{sC}, {RING}
        v_lshl_add_u32 v69, v{vG}, 3, v66
        v_lshl_add_u32 v69, v69, 7, s{sC}
        v_and_b32 v71, 1, v{vL}
        v_lshl_add_u32 v69, v71, 3, v69
        v_lshrrev_b32 v71, 1, v67
        v_xor_b32 v71, v71, v66""")
        for k in range(4): p(f"v_xor_b32 v72, {2*k}, v71\nv_lshl_add_u32 v{52+k}, v72, 4, v69")
        p(f"""v_lshlrev_b32 v69, 14, v66
        v_lshl_add_u32 v69, v67, 4, v69
        v_lshl_add_u32 v69, v{vG}, 6, v69
        s_lshl_b32 s{sC}, s{sWV}, 8
        v_add_u32 v8, s{sC}, v69
        v_lshlrev_b32 v9, 4, v{vG}
        v_add_u32 v9, {GW}, v9""")
    return p
def frag_reads(role, step, ks, gate):
    nfb = 4 if role == "A" else 2
    hi = (step & 3) >> 1; lo = (step & 1) * 32768
    kso, ho = (8192, 1024) if role == "A" else (4096, 512)
    r = []
    def w(fb):
        for h in range(2): r.append([I(f"ds_read_b64_tr_b16 v[{FW[ks]+4*fb+2*h}:{FW[ks]+4*fb+2*h+1}], v{vWA+4*hi+fb} offset:{lo+ks*kso+h*ho}", f"f{ks}")])
    def x(tb): r.append([I(f"ds_read_b128 v[{FX[ks]+4*tb}:{FX[ks]+4*tb+3}], v{vXA+2*hi+ks} offset:{lo+tb*2048}", f"f{ks}")])
    w(0)
    for tb in range(4): x(tb)
    for fb in range(1, nfb): w(fb)
    if gate: r.append([I(f"ds_read_b128 v[{GF[ks]}:{GF[ks]+3}], v228 offset:{64*ks}", f"f{ks}")])
    return r
def mfmas(role, step, ks, gate):
    nfb = 4 if role == "A" else 2
    m = []
    first = step == 0 and ks == 0
    for fb in range(nfb):
        for tb in range(4):
            a = ACC1 + (fb*4 + tb)*4
            c = f"v[{BIAS+4*fb}:{BIAS+4*fb+3}]" if first else f"v[{a}:{a+3}]"
            m.append(I(f"v_mfma_f32_16x16x32_bf16 v[{a}:{a+3}], v[{FW[ks]+4*fb}:{FW[ks]+4*fb+3}], v[{FX[ks]+4*tb}:{FX[ks]+4*tb+3}], {c}"))
    if gate:
        for tb in range(4):
            a = GACC + 4*tb
            m.append(I(f"v_mfma_f32_16x16x32_bf16 v[{a}:{a+3}], v[{GF[ks]}:{GF[ks]+3}], v[{FX[ks]+4*tb}:{FX[ks]+4*tb+3}], " + ("0" if first else f"v[{a}:{a+3}]")))
    return m
def gate_adv():
    return P()(f"""v_add_u32 v228, s{sGC}, v9
    s_add_u32 s{sGC}, s{sGC}, 128
    s_cmp_eq_u32 s{sGC}, 1280
    s_cselect_b32 s{sGC}, 0, s{sGC}""").l
def gemm1(role, gate, last_fill):
    p = P(); nw = 4 if role == "A" else 2
    p.wvm("st0"); p("s_waitcnt lgkmcnt(0)\ns_barrier")
    if gate: p.ext(gate_adv())
    for g in frag_reads(role, 0, 0, gate): p.ext(g)
    if role == "A":
        for db in range(4):
            for h in range(2):
                k = (db ^ (2*h))
                p(f"ds_read_b64_tr_b16 v[{36+4*db+2*h}:{37+4*db+2*h}], v{52+k} offset:{512*h}", "ut")
    for step in range(10):
        p.wlg("f0")
        fill = frag_reads(role, step, 1, gate)
        m = mfmas(role, step, 0, gate)
        body = weave(m, fill, 0, 1, 2)
        if step == 0 and role == "A":
            st = [[I("@wlg ut")]]
            for db in range(4):
                st.append([I(f"s_add_u32 s{sT1}, s{sUS}, {db*65536}"), I(f"buffer_store_dwordx4 v[{36+4*db}:{39+4*db}], v8, s[{sWS}:{sWS+3}], s{sT1} offen sc1", "uts")])
            body = weave(body, st, len(body) - 8, 2)
        p.ext(body)
        if step < 9: p.wvm(f"st{step+1}")
        if step == 2 and role == "A": p.wvm("uts")
        p("s_waitcnt lgkmcnt(0)\ns_barrier")
        fill = []
        if step < 9:
            if gate: fill.append(gate_adv())
            fill += frag_reads(role, step + 1, 0, gate)
        m = mfmas(role, step, 1, gate)
        body = weave(m, fill, 0, 1, 2)
        d = []
        if step == 2 and role == "A":
            q = P(); flag_store(q, sT2); d += groups(q)
        if step + 4 < 10:
            gx, gw = dma_x(step + 4), dma_w(step + 4, nw)
            d += [gx[:2]] + [[i] for i in gx[2:]] + [gw[:2]] + [[i] for i in gw[2:nw+1]] + [gw[nw+1:]]
        if step == 8: d += last_fill
        if role == "A": body = weave(body, d, 14, 1.6)
        else: body = weave(body, d, 6, 1.3)
        p.ext(body)
    return p
def gate_fin():
    p = P(); l = lab("gf")
    p(f"""s_cmp_lg_u32 s{sCT}, 0
    s_cbranch_scc1 {l}
    v_cmp_eq_u32 vcc, 1, v{vG}
    s_nop 7
    v_cndmask_b32 v{GACC}, v{GACC}, v{GACC+4}, vcc
    v_cmp_eq_u32 vcc, 2, v{vG}
    v_cndmask_b32 v{GACC}, v{GACC}, v{GACC+8}, vcc
    v_cmp_eq_u32 vcc, 3, v{vG}
    v_cndmask_b32 v{GACC}, v{GACC}, v{GACC+12}, vcc
    v_cvt_pk_bf16_f32 v{GACC}, v{GACC}, v{GACC}
    v_lshlrev_b32 v{GACC}, 16, v{GACC}
    v_mul_f32 v{GACC}, 0xbfb8aa3b, v{GACC}
    v_exp_f32 v{GACC}, v{GACC}
    v_add_f32 v{GACC}, 1.0, v{GACC}
    v_rcp_f32 v{GACC}, v{GACC}
    v_cvt_pk_bf16_f32 v{GACC}, v{GACC}, v{GACC}
    v_lshlrev_b32 v{GACC}, 16, v{GACC}
    {l}:
    s_lshl_b32 s{sT1}, s{sRB}, 1
    s_lshr_b32 s{sC}, s{sWV}, 1
    s_add_u32 s{sT1}, s{sT1}, s{sC}
    s_lshl_b32 s{sT1}, s{sT1}, 8
    s_add_u32 s{sT1}, s{sT1}, {GBUF}
    s_and_b32 s{sC}, s{sWV}, 1
    s_or_b32 s{sC}, s{sC}, s{sCT}
    s_cmp_eq_u32 s{sC}, 0
    s_cselect_b32 s{sT1}, s{sT1}, {OOB}
    v_lshlrev_b32 v{GACC+1}, 2, v{vL}""")
    p(f"buffer_store_dword v{GACC}, v{GACC+1}, s[{sWS}:{sWS+3}], s{sT1} offen sc1", "hst")
    return p
def gelu(role, fill, fstart=4, fstep=10):
    p = P(); ns = 2 if role == "A" else 1
    pre = P()
    pre(f"""s_lshl_b32 s{sUS}, s{sRB}, 1
    s_lshr_b32 s{sC}, s{sWV}, 1
    s_add_u32 s{sUS}, s{sUS}, s{sC}
    s_mul_i32 s{sUS}, s{sUS}, 221184
    s_and_b32 s{sC}, s{sWV}, 1""")
    if role == "A": pre(f"s_lshl_b32 s{sC}, s{sC}, 13\ns_add_u32 s{sUS}, s{sUS}, s{sC}\ns_lshl_b32 s{sC}, s{sCT}, 14\ns_add_u32 s{sUS}, s{sUS}, s{sC}")
    else: pre(f"s_lshl_b32 s{sC}, s{sC}, 12\ns_add_u32 s{sUS}, s{sUS}, s{sC}\ns_lshl_b32 s{sC}, s{sCT}, 13\ns_add_u32 s{sUS}, s{sUS}, s{sC}\ns_add_u32 s{sUS}, s{sUS}, {48*4096}")
    pre(f"""s_mov_b32 s{sK1}, 0xbdd2d3e8
    s_mov_b32 s{sK1+1}, 0xbdd2d3e8
    v_mov_b32 v128, 0xc0135761
    v_mov_b32 v129, 0xc0135761
    s_mov_b32 s{sK0}, 1.0
    s_mov_b32 s{sK0+1}, 1.0""")
    gi = 0
    for s in range(ns):
        for tb in range(4):
            T = 132 + 8*(gi & 1); O = 148 + 4*(gi % 4); gi += 1
            prs = [ACC1 + ((2*s + u//2)*4 + tb)*4 + 2*(u % 2) for u in range(4)]
            for u, a in enumerate(prs): p(f"v_pk_mul_f32 v[{T+2*u}:{T+2*u+1}], v[{a}:{a+1}], v[{a}:{a+1}]")
            for u, a in enumerate(prs): p(f"v_pk_fma_f32 v[{T+2*u}:{T+2*u+1}], v[{T+2*u}:{T+2*u+1}], s[{sK1}:{sK1+1}], v[128:129]")
            for u, a in enumerate(prs): p(f"v_pk_mul_f32 v[{T+2*u}:{T+2*u+1}], v[{T+2*u}:{T+2*u+1}], v[{a}:{a+1}]")
            for u in range(8): p(f"v_exp_f32_e64 v{T+u}, v{T+u}")
            for u in range(4): p(f"v_pk_add_f32 v[{T+2*u}:{T+2*u+1}], v[{T+2*u}:{T+2*u+1}], s[{sK0}:{sK0+1}]")
            for u in range(8): p(f"v_rcp_f32_e64 v{T+u}, v{T+u}")
            for u, a in enumerate(prs): p(f"v_pk_mul_f32 v[{T+2*u}:{T+2*u+1}], v[{T+2*u}:{T+2*u+1}], v[{a}:{a+1}]")
            for u in range(4): p(f"v_cvt_pk_bf16_f32 v{O+u}, v{T+2*u}, v{T+2*u+1}")
            p(f"buffer_store_dwordx4 v[{O}:{O+3}], v{vW2a if s == 0 else vW2b}, s[{sWS}:{sWS+3}], s{sUS} offen offset:{tb*1024} sc1", "hst")
    pre.ext(weave(p.l, fill, fstart, fstep))
    return pre
def c_setup():
    p = P()
    srd(p, sW, pW2, 1728*1280)
    p(f"""s_lshl_b32 s{sCH}, s{sCT}, 2
    s_add_u32 s{sCH}, s{sCH}, s{sWV}
    s_mul_i32 s{sOW}, s{sCH}, 40960
    s_mul_i32 s{sOX}, s{sCH}, 5120
    s_add_u32 s{sOX}, s{sOX}, {W2P}
    s_cmp_lt_u32 s{sCH}, 54
    s_cselect_b32 s{sOW}, s{sOW}, {OOB}
    s_cselect_b32 s{sOX}, s{sOX}, {OOB}
    s_lshl_b32 s{sMX}, s{sWV}, 15
    s_add_u32 s{sMX}, s{sMX}, {RING}
    v_lshrrev_b32 v64, 3, v{vL}
    v_bfe_u32 v65, v{vL}, 1, 2
    v_xor_b32 v65, v65, v{vG}
    v_mul_u32_u24 v67, 1280, v64
    v_lshl_add_u32 v67, v65, 5, v67
    v_and_b32 v64, 1, v{vL}
    v_lshl_add_u32 v{vDX}, v64, 4, v67""")
    for i in range(1, 4): p(f"v_add_u32 v{vDX+i}, {i*9216}, v{vDX}")
    return p
def dma_c(cc):
    g = [I(f"s_add_u32 m0, s{sMX}, {(cc & 7)*4096}")]
    for i in range(4): g.append(I(f"buffer_load_dwordx4 v{vDX+i}, s[{sW}:{sW+3}], s{sOW} offen offset:{i*1024} lds", f"cu{cc}"))
    g.append(I(f"s_add_u32 s{sOW}, s{sOW}, 128"))
    return g
def relayout():
    p = P()
    p(f"""v_bfe_u32 v66, v{vL}, 2, 2
    v_and_b32 v67, 3, v{vL}
    v_lshl_add_u32 v69, v{vG}, 2, v66
    v_bfe_u32 v70, v69, 1, 2
    v_lshl_add_u32 v69, v69, 7, s{sMX}
    v_lshl_add_u32 v69, v67, 3, v69""")
    for k in range(4): p(f"v_xor_b32 v71, {k}, v70\nv_lshl_add_u32 v{vWA+k}, v71, 5, v69")
    for cc in range(10):
        p.wvm(f"cu{cc}")
        R0 = 64 + 16*(cc % 4)
        for k in range(4):
            for h in range(2): p(f"ds_read_b64_tr_b16 v[{R0+4*k+2*h}:{R0+4*k+2*h+1}], v{vWA+k} offset:{(cc & 7)*4096 + 2048*h}", f"cr{k}")
        for k in range(4):
            c2, db = divmod(4*cc + k, 5)
            p(f"s_add_u32 s{sT1}, s{sOX}, {c2*276480 + db*1024}")
            p.wlg(f"cr{k}")
            p(f"buffer_store_dwordx4 v[{R0+4*k}:{R0+4*k+3}], v{vW2a}, s[{sWS}:{sWS+3}], s{sT1} offen sc1", "pst")
        if cc + 8 < 10: p.ext(dma_c(cc + 8))
    p(f"s_lshl_b32 s{sT1}, s{sCT}, 3\ns_add_u32 s{sT1}, s{sT1}, {FLG_P}")
    p.wvm("pst"); p("s_barrier"); flag_store(p, sT1)
    return p
```

```python
from gen2 import *
import sys
vPOLL = 14
def up_addr():
    p = P()
    p(f"""s_lshr_b32 s{sC}, s{sPAIR}, 5
    s_lshl_b32 s{sC}, s{sC}, 7
    s_add_u32 s{sC}, s{sC}, {FLG_U}
    v_and_b32 v13, 1, v{vG}
    v_mov_b32 v14, s{sC}
    v_cmp_eq_u32 vcc, 0, v13
    v_mov_b32 v13, {FLG_P}
    v_cndmask_b32 v13, v13, v14, vcc
    v_lshl_add_u32 v13, v{vN}, 3, v13""")
    poll_issue(p, vPOLL, 13, "pup")
    return p
def u_issue(role):
    p = P()
    poll_check(p, vPOLL, 13, "pup")
    p(f"s_lshr_b32 s{sC}, s{sPAIR}, 1\ns_lshl_b32 s{sC}, s{sC}, 14\ns_add_u32 s{sT1}, s{sC}, {UT}")
    if role == "A":
        p(f"""s_and_b32 s{sC}, s{sPAIR}, 1
        s_lshl_b32 s{sC}, s{sC}, 5
        s_add_u32 s{sT1}, s{sT1}, s{sC}
        v_lshrrev_b32 v13, 1, v0
        v_and_b32 v14, 1, v0
        v_lshlrev_b32 v13, 6, v13
        v_lshl_add_u32 v13, v14, 4, v13
        s_add_u32 s{sT2}, s{sT1}, 8192""")
        p(f"buffer_load_dwordx4 v[36:39], v13, s[{sWS}:{sWS+3}], s{sT1} offen sc1\nbuffer_load_dwordx4 v[40:43], v13, s[{sWS}:{sWS+3}], s{sT2} offen sc1", "ud")
    else:
        p(f"v_lshlrev_b32 v13, 4, v0")
        for i in range(4):
            p(f"buffer_load_dwordx4 v[{36+4*i}:{39+4*i}], v13, s[{sWS}:{sWS+3}], s{sT1} offen sc1", "ud")
            if i < 3: p(f"s_add_u32 s{sT1}, s{sT1}, 4096")
    return p
def u_write(role):
    p = P()
    sh, n, istr = (1, 2, 2048) if role == "A" else (2, 4, 1024)
    p(f"""v_bfe_u32 v13, v0, 5, 2
    v_and_b32 v14, 31, v0
    v_mul_u32_u24 v13, {USTR}, v13
    v_mov_b32 v64, 0
    v_mov_b32 v65, 0
    v_mov_b32 v66, 0
    v_mov_b32 v67, 0
    v_lshl_add_u32 v13, v14, 4, v13
    v_and_b32 v14, {n-1}, v0
    v_mul_u32_u24 v14, {USTR}, v14""")
    p(f"ds_write_b128 v13, v[64:67] offset:{UB}", "uw")
    p(f"v_lshrrev_b32 v13, {sh}, v0\nv_lshl_add_u32 v13, v13, 4, v14")
    p.wvm("ud")
    for i in range(n): p(f"ds_write_b128 v13, v[{36+4*i}:{39+4*i}] offset:{UB+512+i*istr}", "uw")
    return p
CACC = 64; CT = (96, 160); CU = (128, 192); vTB = (24, 28); vT0, vU0 = 32, 33
def conv(rnd, fill, hooks):
    p = P()
    p(f"""s_lshr_b32 s{sC}, s{sWV}, 1
    s_mul_i32 s{sT1}, s{sC}, 8320
    s_add_u32 s{sC}, s{sC}, {2*rnd}
    s_mul_i32 s{sT2}, s{sC}, {USTR}
    s_and_b32 s{sC}, s{sWV}, 1
    s_lshl_b32 s{sC}, s{sC}, 6
    s_sub_u32 s{sT1}, s{sT1}, s{sC}
    s_sub_u32 s{sT2}, s{sT2}, s{sC}
    s_add_u32 s{sT1}, s{sT1}, {RB + 4062}
    s_add_u32 s{sT2}, s{sT2}, {UB + 96}
    v_and_b32 v13, 1, v{vN}
    v_xor_b32 v13, 1, v13
    v_mul_u32_u24 v13, 4158, v13
    v_lshl_add_u32 v13, v{vG}, 4, v13
    v_lshlrev_b32 v14, 1, v{vN}
    v_sub_u32 v13, v13, v14
    v_add_u32 v{vT0}, s{sT1}, v13
    v_lshl_add_u32 v13, v{vN}, 5, s{sT2}
    v_lshl_add_u32 v{vU0}, v{vG}, 4, v13""")
    def tadr(k): return [[I(f"v_add_u32 v{vTB[k&1]+u}, {-(1024*u + 512 + 128*k)}, v{vT0}")] for u in range(4)]
    def trd(k):
        g = []
        for a in range(8):
            o = 0 if a & 1 else 128
            r = CT[k&1] + 4*a
            g.append([I(f"ds_read2_b32 v[{r}:{r+1}], v{vTB[k&1]+a//2} offset0:{o} offset1:{o+1}", f"t{k}_{a}")])
            g.append([I(f"ds_read2_b32 v[{r+2}:{r+3}], v{vTB[k&1]+a//2} offset0:{o+2} offset1:{o+3}", f"t{k}_{a}")])
        return g
    def urd(k, ms): return [[I(f"ds_read_b128 v[{CU[k&1]+4*m}:{CU[k&1]+4*m+3}], v{vU0} offset:{512*m+384-128*k}", f"u{k}_{m}")] for m in ms]
    for g in tadr(0): p.ext(g)
    p("s_waitcnt lgkmcnt(0)\ns_barrier")
    for g in urd(0, [0]) + trd(0) + urd(0, range(1, 8)): p.ext(g)
    nf = len(fill); fi = 0
    for k in range(4):
        if k in hooks: p.ext(hooks[k])
        m_ = []
        for m in range(8):
            for a in range(8 - m):
                pre = []
                if m == 0: pre.append(I(f"@wlg t{k}_{a}"))
                if a == 0: pre.append(I(f"@wlg u{k}_{m}"))
                j = CACC + 4*(a + m)
                c = "0" if (k == 0 and m == 0) else f"v[{j}:{j+3}]"
                m_.append(pre + [I(f"v_mfma_f32_16x16x32_bf16 v[{j}:{j+3}], v[{CT[k&1]+4*a}:{CT[k&1]+4*a+3}], v[{CU[k&1]+4*m}:{CU[k&1]+4*m+3}], {c}")])
        rd = []
        if k < 3:
            ta = tadr(k+1)
            rd = [ta[0] + ta[1] + ta[2] + ta[3]] + urd(k+1, [0]) + trd(k+1) + urd(k+1, range(1, 8))
        f = fill[fi: (nf*(k+1))//4]; fi = (nf*(k+1))//4
        start = 8 if k == 0 else 2
        out = []; ri = 0; gi = 0
        for i, mm in enumerate(m_):
            out += mm
            if i >= start and ri < len(rd): out += rd[ri]; ri += 1
            while gi < len(f) and gi * 36 <= i * len(f): out += f[gi]; gi += 1
        assert ri == len(rd)
        while gi < len(f): out += f[gi]; gi += 1
        p.ext(out)
    return p
def aout(rnd, pre_bar=None):
    p = P()
    p(f"""s_lshr_b32 s{sC}, s{sWV}, 1
    s_mul_i32 s{sT1}, s{sC}, {CS}
    s_and_b32 s{sC}, s{sWV}, 1
    s_lshl_b32 s{sC}, s{sC}, 13
    s_add_u32 s{sT1}, s{sT1}, s{sC}
    s_add_u32 s{sT1}, s{sT1}, {PART}
    v_lshrrev_b32 v24, 1, v{vG}
    v_lshl_add_u32 v24, v24, 3, v{vN}
    v_and_b32 v24, 15, v24
    v_lshl_add_u32 v25, v{vG}, 8, s{sT1}
    v_lshl_add_u32 v24, v24, 4, v25""")
    for j in range(8): p(f"ds_write_b128 v24, v[{CACC+4*j}:{CACC+4*j+3}] offset:{1024*j}", "pw")
    p(f"""s_lshl_b32 s{sC}, s{sWV}, 10
    s_add_u32 s{sC}, s{sC}, {PART}
    v_and_b32 v25, 1, v{vL}
    v_bfe_u32 v26, v{vL}, 1, 1
    v_lshrrev_b32 v27, 2, v{vL}
    v_lshl_add_u32 v27, v25, 3, v27
    v_and_b32 v27, 15, v27
    v_mul_u32_u24 v26, {CS}, v26
    v_lshl_add_u32 v26, v25, 9, v26
    v_lshl_add_u32 v26, v27, 4, v26
    v_add_u32 v26, s{sC}, v26
    v_lshrrev_b32 v27, 2, v0
    v_mul_u32_u24 v27, 20480, v27
    v_and_b32 v25, 3, v0
    v_lshl_add_u32 v27, v25, 4, v27
    s_add_u32 s{sC}, s{sPAIR}, {rnd}
    s_lshl_b32 s{sT1}, s{sC}, 6
    s_add_u32 s{sT1}, s{sT1}, {APR}
    s_add_u32 s{sT2}, s{sT1}, {64*20480}
    s_lshl_b32 s{sUS}, s{sC}, 3
    s_add_u32 s{sUS}, s{sUS}, {FLG_A}""")
    if pre_bar: p.ext(pre_bar)
    p("s_waitcnt lgkmcnt(0)\ns_barrier")
    for i in range(2):
        for h in range(2):
            for u in range(2): p(f"ds_read_b128 v[{96+16*i+8*h+4*u}:{99+16*i+8*h+4*u}], v26 offset:{4096*i+8192*h+256*u}", f"pr{i}")
    for i in range(2):
        p.wlg(f"pr{i}")
        b = 96 + 16*i
        for u in range(4): p(f"v_pk_add_f32 v[{b+2*u}:{b+2*u+1}], v[{b+2*u}:{b+2*u+1}], v[{b+8+2*u}:{b+9+2*u}]")
        for u in range(4): p(f"v_cvt_pk_bf16_f32 v{128+4*i+u}, v{b+2*u}, v{b+2*u+1}")
        p(f"buffer_store_dwordx4 v[{128+4*i}:{131+4*i}], v27, s[{sWS}:{sWS+3}], s{sT1 if i == 0 else sT2} offen sc1", "ast")
    return p
def hflag_hook(role):
    p = P()
    p(f"s_lshl_b32 s{sT1}, s{sRB}, 7\ns_lshl_b32 s{sC}, s{sCT}, 3\ns_add_u32 s{sT1}, s{sT1}, s{sC}\ns_add_u32 s{sT1}, s{sT1}, {FLG_H + (0 if role == 'A' else 96)}")
    p.wvm("hst"); p("s_barrier"); flag_store(p, sT1)
    return p
def tail_fill():
    q = P()
    q(f"s_mul_i32 s{sSPIN}, s{sC2}, 160\nv_lshl_add_u32 v12, v{vG}, 3, s{sSPIN}")
    g0 = [q.l]
    for db in range(5): g0.append([I(f"global_load_dwordx2 v[{46+2*db}:{47+2*db}], v12, s[{pB2}:{pB2+1}] offset:{32*db}", "b2")])
    q = P()
    q(f"""s_lshr_b32 s{sSPIN}, s{sRT}, 1
    s_lshl_b32 s{sSPIN}, s{sSPIN}, 7
    s_add_u32 s{sSPIN}, s{sSPIN}, {FLG_H}
    v_min_u32 v13, 14, v{vN}
    v_lshl_add_u32 v13, v13, 3, s{sSPIN}""")
    poll_issue(q, vPOLL, 13, "ph")
    return g0, [q.l]
G2ACC = 64; HR = 144
def gemm2():
    p = P(); DH = OPT["DH"]
    def hl(j): return [[I(f"buffer_load_dwordx4 v[{HR+16*(j%DH)+4*s}:{HR+16*(j%DH)+4*s+3}], v{vH+s}, s[{sWS}:{sWS+3}], s{sHO+j} offen sc1", f"h{j}")] for s in range(4)]
    poll_check(p, vPOLL, 13, "ph")
    for j in range(DH - 1):
        for g in hl(j): p.ext(g)
    ts(p, 10)
    p.wvm("b2"); unpack(p, 36, 46, 5)
    srd(p, sT, pOut, 2048*1280)
    AL = HR + 16*(14 % DH)
    for j in range(14):
        p.wvm(f"w2_{j}"); p.wvm(f"h{j}")
        m = []
        for s in range(4):
            for db in range(5):
                a = G2ACC + 20*s + 4*db
                c = f"v[{a}:{a+3}]" if j else (f"v[{36+4*db}:{39+4*db}]" if s == 0 else "0")
                m.append(I(f"v_mfma_f32_16x16x32_bf16 v[{a}:{a+3}], {w2reg(5*j+db)}, v[{HR+16*(j%DH)+4*s}:{HR+16*(j%DH)+4*s+3}], {c}"))
        f = hl(j + DH - 1) if j + DH - 1 < 14 else []
        body = weave(m, f, 1, 5)
        ex = []
        if j == 2:
            q = P(); q.wvm("ast"); q("s_barrier"); flag_store(q, sUS); ex = [q.l]
        if j == 14 - DH:
            q = P()
            q(f"""s_mul_i32 s{sC}, s{sC2}, 320
            s_add_u32 s{sC}, s{sC}, {FLG_A}
            v_min_u32 v13, 39, v{vL}
            v_lshl_add_u32 v13, v13, 3, s{sC}""")
            poll_issue(q, vPOLL, 13, "pa"); ex = [q.l]
        if j == 12:
            q = P()
            poll_check(q, vPOLL, 13, "pa")
            q(f"""s_lshl_b32 s{sC}, s{sRT}, 2
            s_add_u32 s{sC}, s{sC}, s{sWV}
            s_mul_i32 s{sT1}, s{sC}, 20480
            s_lshl_b32 s{sT2}, s{sC}, 6
            s_mul_i32 s{sC}, s{sC2}, 2560
            s_add_u32 s{sT1}, s{sT1}, s{sC}
            s_add_u32 s{sT1}, s{sT1}, {APR}
            s_add_u32 s{sT2}, s{sT2}, {GBUF}
            v_cmp_gt_u32 vcc, 32, v{vL}
            v_mov_b32 v12, {OOB}
            v_lshlrev_b32 v13, 2, v{vN}
            v_cndmask_b32 v12, v12, v{vW2a}, vcc""")
            q(f"""buffer_load_dwordx4 v[{AL}:{AL+3}], v{vW2a}, s[{sWS}:{sWS+3}], s{sT1} offen sc1
            buffer_load_dwordx4 v[{AL+4}:{AL+7}], v{vW2a}, s[{sWS}:{sWS+3}], s{sT1} offen offset:1024 sc1
            buffer_load_dwordx4 v[{AL+8}:{AL+11}], v12, s[{sWS}:{sWS+3}], s{sT1} offen offset:2048 sc1
            buffer_load_dword v{vGv}, v13, s[{sWS}:{sWS+3}], s{sT2} offen sc1""", "ad")
            ex = [q.l]
        if j == 13:
            q = P()
            for s in range(1, 4):
                q(f"s_xor_b32 s{sC}, s{sWV}, {s}\ns_mul_i32 s{sC}, s{sC}, 15360\ns_add_u32 s{sC}, s{sC}, {RED + (s-1)*5120}\nv_add_u32 v{24+s}, s{sC}, v{vW2a}")
            q(f"""s_mul_i32 s{sC}, s{sWV}, 15360
            s_add_u32 s{sC}, s{sC}, {RED}
            v_add_u32 v24, s{sC}, v{vW2a}
            s_mul_i32 s{sC}, s{sWV}, 3072
            s_add_u32 s{sC}, s{sC}, {AST}
            v_add_u32 v28, s{sC}, v{vW2a}
            v_lshl_add_u32 v29, v{vL}, 3, s{sC}
            v_mul_u32_u24 v30, 176, v{vN}
            v_lshl_add_u32 v30, v{vG}, 3, v30
            v_add_u32 v30, s{sC}, v30""")
            for i in range(3):
                q(f"""v_add_u32 v12, {64*i}, v{vL}
                v_mul_u32_u24 v13, 6554, v12
                v_lshrrev_b32 v13, 16, v13
                v_mul_u32_u24 v14, 10, v13
                v_sub_u32 v12, v12, v14
                v_mul_u32_u24 v14, 176, v13
                v_lshl_add_u32 v14, v12, 4, v14
                v_add_u32 v{16+i}, s{sC}, v14
                v_mul_u32_u24 v14, 1280, v13
                v_lshl_add_u32 v{20+i}, v12, 4, v14""")
            q(f"""v_cmp_gt_u32 vcc, 32, v{vL}
            v_mov_b32 v12, {OOB}
            s_lshl_b32 s{sC}, s{sRT}, 2
            v_cndmask_b32 v22, v12, v22, vcc
            s_add_u32 s{sC}, s{sC}, s{sWV}
            s_mul_i32 s{sT1}, s{sC}, 20480
            s_mul_i32 s{sC}, s{sC2}, 160
            s_add_u32 s{sT1}, s{sT1}, s{sC}""")
            body = weave(body, groups(q), 0, 0.4); ex = []
        body = weave(body, ex, 12 if j != 12 else 4, 1)
        p.ext(body)
    ts(p, 11)
    for s in range(1, 4):
        for db in range(5):
            a = G2ACC + 20*s + 4*db
            p(f"ds_write_b128 v{24+s}, v[{a}:{a+3}] offset:{db*1024}", "rw")
    p.wvm("ad")
    for i in range(3): p(f"ds_write_b128 v28, v[{AL+4*i}:{AL+4*i+3}] offset:{i*1024}", "rw")
    p("s_waitcnt lgkmcnt(0)\ns_barrier")
    ts(p, 12)
    for db in range(5):
        p(f"ds_read_b64_tr_b16 v[{36+2*db}:{37+2*db}], v29 offset:{db*512}", f"r{db}")
        for s in range(1, 4):
            a = G2ACC + 20*s + 4*db
            p(f"ds_read_b128 v[{a}:{a+3}], v24 offset:{(s-1)*5120+db*1024}", f"r{db}")
    for db in range(5):
        p.wlg(f"r{db}")
        a = G2ACC + 4*db
        for s in range(1, 4):
            for u in (0, 2): p(f"v_pk_add_f32 v[{a+u}:{a+u+1}], v[{a+u}:{a+u+1}], v[{a+20*s+u}:{a+20*s+u+1}]")
        unpack(p, 48, 36 + 2*db, 1)
        for u in (0, 2): p(f"v_pk_add_f32 v[{48+u}:{49+u}], v[{48+u}:{49+u}], v[{a+u}:{a+u+1}] neg_lo:[0,1] neg_hi:[0,1]")
        for u in (0, 2): p(f"v_pk_fma_f32 v[{a+u}:{a+u+1}], v[{48+u}:{49+u}], v[{vGv}:{vGv+1}], v[{a+u}:{a+u+1}] op_sel_hi:[1,0,1]")
        p(f"v_cvt_pk_bf16_f32 v{52+2*(db&1)}, v{a}, v{a+1}\nv_cvt_pk_bf16_f32 v{53+2*(db&1)}, v{a+2}, v{a+3}")
        p(f"ds_write_b64 v30, v[{52+2*(db&1)}:{53+2*(db&1)}] offset:{32*db}", "ow")
    for i in range(3): p(f"ds_read_b128 v[{96+4*i}:{99+4*i}], v{16+i}", f"o{i}")
    for i in range(3):
        p.wlg(f"o{i}")
        p(f"buffer_store_dwordx4 v[{96+4*i}:{99+4*i}], v{20+i}, s[{sT}:{sT+3}], s{sT1} offen", "out")
    if OPT["ts"]:
        p("s_waitcnt vmcnt(0)"); ts(p, 13)
        l = lab("tse")
        p(f"""s_cmp_lg_u32 s{sWV}, 0
        s_cbranch_scc1 {l}
        s_add_u32 s{pWs}, s{pWs}, {TS_OFF}
        s_addc_u32 s{pWs+1}, s{pWs+1}, 0
        s_lshl_b32 s{sC}, s2, 7
        v_lshl_add_u32 v12, v{vL}, 3, s{sC}
        s_mov_b64 exec, 0xffff
        global_store_dwordx2 v12, v[{vTS}:{vTS+1}], s[{pWs}:{pWs+1}]
        {l}:""")
    p("s_endpgm")
    return p
def dbg_dump_R(p):
    p(f"s_waitcnt vmcnt(0) lgkmcnt(0)\ns_barrier\ns_lshl_b32 s{sC}, s2, 15\ns_add_u32 s{sC}, s{sC}, {DBG}\nv_lshlrev_b32 v12, 4, v0")
    for i in range(8):
        p(f"ds_read_b128 v[64:67], v12 offset:{i*4096}\ns_waitcnt lgkmcnt(0)\nbuffer_store_dwordx4 v[64:67], v12, s[{sWS}:{sWS+3}], s{sC} offen\ns_add_u32 s{sC}, s{sC}, 4096\ns_waitcnt vmcnt(0)")
    p("s_endpgm")

def role_head(role):
    p = P()
    if role != "A": p(f"L_{role}:")
    prefetch_code(p, role)
    x, sl, pp, q = sA, sB, sOX, sOW
    if role == "A":
        p(f"""s_mul_i32 s{sCT}, s{q}, 6
        s_lshr_b32 s{sC}, s{sl}, 2
        s_add_u32 s{sCT}, s{sCT}, s{sC}
        s_and_b32 s{sC}, s{sl}, 3
        s_lshl_b32 s{sRB}, s{pp}, 2
        s_add_u32 s{sRB}, s{sRB}, s{sC}
        s_mul_i32 s{sPAIR}, s{x}, 24
        s_add_u32 s{sPAIR}, s{sPAIR}, s{sl}
        s_mul_i32 s{sC}, s{sRB}, 3
        s_add_u32 s{sC}, s{sC}, s{sCT}""")
        mod10(p, sCH, sC, sSPIN)
    elif role == "B":
        p(f"""s_mul_i32 s{sC}, s{q}, 6
        s_add_u32 s{sC}, s{sC}, s{sl}
        s_sub_u32 s{sC}, s{sC}, 24
        s_lshr_b32 s{sCT}, s{sC}, 2
        s_and_b32 s{sC}, s{sC}, 3
        s_lshl_b32 s{sRB}, s{pp}, 2
        s_add_u32 s{sRB}, s{sRB}, s{sC}
        s_mul_i32 s{sPAIR}, s{x}, 6
        s_add_u32 s{sPAIR}, s{sPAIR}, s{sl}
        s_lshl_b32 s{sPAIR}, s{sPAIR}, 1
        s_add_u32 s{sPAIR}, s{sPAIR}, {192-48}
        s_add_u32 s{sC}, s{sRB}, s{sCT}
        s_mul_i32 s{sC}, s{sC}, 3
        s_add_u32 s{sC}, s{sC}, 6""")
        mod10(p, sCH, sC, sSPIN)
    else:
        p(f"""s_lshl_b32 s{sCT}, s{x}, 1
        s_add_u32 s{sCT}, s{sCT}, s{sl}
        s_sub_u32 s{sCT}, s{sCT}, 30
        s_lshl_b32 s{sPAIR}, s{sCT}, 1
        s_add_u32 s{sPAIR}, s{sPAIR}, 288""")
    params_issue(p, role)
    rot = P()
    if role == "C":
        p.ext(c_setup())
        for cc in range(3): p.ext(dma_c(cc))
        nonce_issue(p)
        fill = [dma_c(cc) for cc in range(3, 8)]
    else:
        nw = 4 if role == "A" else 2
        p.ext(g1_setup(role))
        p(f"s_mov_b32 s{sKA}, s{sCH}")
        p.ext(dma_x(0)); p.ext(dma_w(0, nw))
        p.ext(g1_bias_issue(role))
        nonce_issue(p)
        p.ext(dma_x(1))
        fill = [dma_w(1, nw), dma_x(2), dma_w(2, nw), dma_x(3), dma_w(3, nw)]
    p.ext(g2_offsets()); p.ext(common_v())
    p("s_waitcnt lgkmcnt(0)")
    if role == "A":
        p(f"""s_lshl_b32 s{sGC}, s{sKA}, 7
        s_lshl_b32 s{sUS}, s{sKA}, 18
        s_lshl_b32 s{sC}, s{sRB}, 10
        s_add_u32 s{sUS}, s{sUS}, s{sC}
        s_add_u32 s{sUS}, s{sUS}, {UT}
        s_lshl_b32 s{sC}, s{sRB}, 3
        s_add_u32 s{sT2}, s{sGC}, s{sC}
        s_add_u32 s{sT2}, s{sT2}, {FLG_U}
        s_cmp_lt_u32 s{sCT}, 10
        s_cselect_b32 s{sUS}, s{sUS}, {OOB}
        s_cselect_b32 s{sT2}, s{sT2}, {OOB}""")
    ts(p, 1)
    p.ext(kgen(vP0, 0, 54, fill, 10, 45))
    if OPT["dbg"] == "R": dbg_dump_R(p)
    nonce_check(p)
    ts(p, 2)
    return p
def build():
    SLOW.clear()
    out = []
    st0 = St(); e = entry(); out += resolve(e.l, st0)
    b2g, hpoll = None, None
    for role in "ABC":
        st = st0.copy()
        p = role_head(role)
        if role == "A":
            p.ext(g1_addr(role))
            p(f"s_cmp_eq_u32 s{sCT}, 0\ns_cbranch_scc1 L_A0")
            out += resolve(p.l, st)
            stb = st.copy()
            out += resolve(gemm1("A", False, groups(up_addr())).l + P()("L_A1:").l, st)
            a0 = P()("L_A0:").l + resolve(gemm1("A", True, groups(up_addr())).l + P()("s_branch L_A1").l, stb)
            assert [t[0] for t in st.vm] == [t[0] for t in stb.vm] and len(st.lg) == len(stb.lg)
            p = P(); ts(p, 3)
            p("s_nop 7")
            p.ext(u_issue(role)); p.ext(gate_fin())
            p.ext(gelu(role, w2loads(0, 28), 4, 10)); ts(p, 4)
        elif role == "B":
            p.ext(g1_addr(role)); p.ext(gemm1("B", False, groups(up_addr()))); ts(p, 3)
            p("s_nop 7")
            p.ext(u_issue(role)); p.ext(gelu(role, [])); ts(p, 4)
        else:
            p.ext(relayout()); ts(p, 3); p.ext(up_addr()); p.ext(u_issue(role)); ts(p, 4)
        p.ext(u_write(role))
        hooks = {} if role == "C" else {2: hflag_hook(role)}
        if role != "A":
            p.ext(conv(0, [], hooks)); ts(p, 5); p.ext(aout(0)); ts(p, 6)
            pre = P(); pre.wvm("ast"); post = P(); flag_store(post, sUS)
            p.ext(kgen(vP1, 1, 55, w2loads(0, 28), 0, 9, pre, post)); ts(p, 7)
            hooks = {}
        b2g, hpoll = tail_fill()
        p.ext(conv(0 if role == "A" else 1, b2g + w2loads(28, 70) + hpoll, hooks)); ts(p, 8)
        p.ext(aout(0 if role == "A" else 1)); ts(p, 9)
        p.ext(gemm2())
        out += resolve(p.l, st)
        if role == "A": out += a0
        out += P()("".join(SLOW) + f"L_{role}_end:").l
        SLOW.clear()
    ref = open("cdna_kernels/" + NAME + ".s.ref").read().split("\n")
    hdr = []
    for l in ref:
        if l.startswith("; @launch"): break
        hdr.append(l)
    K = NAME + "_kernel"
    hdr += [f"; @launch grid=(256,1,1) block=(256,1,1) lds={LDS}", '.amdgcn_target "amdgcn-amd-amdhsa--gfx950"', ".text", f".globl {K}", ".p2align 8", f".type {K},@function", f"{K}:"]
    return "\n".join(hdr) + "\n" + text(out) + f"""L_end:
s_endpgm
.section .rodata,"a"
.p2align 6
.amdhsa_kernel {K}
  .amdhsa_next_free_vgpr 512
  .amdhsa_next_free_sgpr 102
  .amdhsa_accum_offset 256
  .amdhsa_group_segment_fixed_size 0
  .amdhsa_kernarg_size 144
  .amdhsa_user_sgpr_count 2
  .amdhsa_user_sgpr_kernarg_segment_ptr 1
  .amdhsa_system_sgpr_workgroup_id_x 1
.end_amdhsa_kernel
"""
if __name__ == "__main__":
    fn = sys.argv[1]
    for a in sys.argv[2:]:
        k, v = a.split("=")
        OPT[k] = int(v) if v.lstrip("-").isdigit() else v
    open(fn, "w").write(build())
```

```python
import re
def vr(a, n=1): return f"v{a}" if n == 1 else f"v[{a}:{a+n-1}]"
def ar(a, n=1): return f"a{a}" if n == 1 else f"a[{a}:{a+n-1}]"
def sr(a, n=1): return f"s{a}" if n == 1 else f"s[{a}:{a+n-1}]"
TRANS = ("v_exp_f32", "v_log_f32", "v_rcp_f32", "v_rsq_f32", "v_sqrt_f32", "v_sin_f32", "v_cos_f32")
RE = re.compile(r"\b([vas])(?:(\d+)|\[(\d+):(\d+)\])")
def regs(tok):
    out = set()
    for m in RE.finditer(tok):
        k = m.group(1)
        if m.group(2) is not None: out.add((k, int(m.group(2))))
        else:
            for i in range(int(m.group(3)), int(m.group(4)) + 1): out.add((k, i))
    if re.search(r"\bvcc\b", tok): out.add(("s", "vcc"))
    if re.search(r"\bm0\b", tok): out.add(("s", "m0"))
    if re.search(r"\bexec\b", tok): out.add(("s", "exec"))
    return out
class I:
    __slots__ = ("t", "tag", "op", "cls", "dst", "src", "srcc", "wide")
    def __init__(self, t, tag=None):
        self.t = t; self.tag = tag
        p = t.split(None, 1); self.op = op = p[0]
        ops = [x.strip() for x in re.split(r",(?![^\[]*\])", p[1])] if len(p) > 1 else []
        self.dst = set(); self.src = set(); self.srcc = set(); self.wide = False
        if t.endswith(":") or op.startswith(".") : self.cls = "label"
        elif op.startswith("@"): self.cls = "pseudo"
        elif op.startswith("v_mfma"):
            self.cls = "mfma"; self.dst = regs(ops[0]); self.src = regs(ops[1]) | regs(ops[2]); self.srcc = regs(ops[3])
        elif op.startswith("v_"):
            self.cls = "trans" if op.replace("_e64", "").replace("_e32", "") in TRANS else "valu"
            self.dst = regs(ops[0])
            for o in ops[1:]: self.src |= regs(o)
            if op.startswith("v_permlane"): self.src |= self.dst; self.dst = self.dst | regs(ops[1])
            if op.startswith("v_writelane") or op.startswith("v_fmac") or op.startswith("v_pk_fmac"): self.src |= self.dst
        elif op.startswith("ds_"):
            self.cls = "ds"
            if op.startswith("ds_read") or op.startswith("ds_bperm"):
                self.dst = regs(ops[0])
                for o in ops[1:]: self.src |= regs(o)
            else:
                for o in ops: self.src |= regs(o)
                if "addtid" in op: self.src.add(("s", "m0"))
        elif op.startswith("buffer_") or op.startswith("global_"):
            self.cls = "vmem"
            if "_load" in op and not re.search(r"\blds\b", t):
                self.dst = regs(ops[0])
                for o in ops[1:]: self.src |= regs(o)
            else:
                for o in ops: self.src |= regs(o)
                if re.search(r"\blds\b", t): self.src.add(("s", "m0"))
                if "store" in op and ("x4" in op or "x3" in op):
                    self.wide = regs(ops[0]) if op.startswith("buffer_") else regs(ops[1])
        elif op.startswith("s_load") or op.startswith("s_memrealtime") or op.startswith("s_memtime"):
            self.cls = "smem"; self.dst = regs(ops[0])
            for o in ops[1:]: self.src |= regs(o)
        elif op.startswith("s_"):
            self.cls = "salu"
            if ops and not op.startswith("s_cmp") and not op.startswith("s_cbranch") and not op.startswith("s_waitcnt") and not op.startswith("s_nop"):
                self.dst = regs(ops[0])
                for o in ops[1:]: self.src |= regs(o)
        else: raise ValueError(t)
class P:
    def __init__(self): self.l = []
    def __call__(self, s, tag=None):
        for x in s.split("\n"):
            x = x.split(";")[0].strip()
            if x: self.l.append(I(x, tag))
        return self
    def ext(self, o): self.l += (o.l if isinstance(o, P) else o); return self
    def wvm(self, tag): self.l.append(I(f"@wvm {tag}"))
    def wlg(self, tag): self.l.append(I(f"@wlg {tag}"))
def groups(p):
    return [[i] for i in p.l]
def weave(main, fill, start=0, step=1.0, per=1):
    out = []; k = 0; pos = start
    for i, m in enumerate(main):
        out.append(m)
        while k < len(fill) and i >= int(pos):
            for _ in range(per):
                if k < len(fill): out += fill[k]; k += 1
            pos += step
    while k < len(fill): out += fill[k]; k += 1
    return out
def cost(i):
    if i.cls in ("pseudo", "label"): return 0
    if i.cls == "trans": return 8
    if i.op == "s_nop": return max(4, int(i.t.split()[1]) + 1)
    return 4
def tlen(main):
    t = 0; tm = -16
    for m in main:
        if m.cls == "mfma": t = max(t, tm + 16); tm = t
        t += cost(m)
    return max(t, tm + 16)
def glued(nx): return nx.op.startswith(("s_cselect", "s_addc", "s_subb", "s_cbranch", "v_cndmask", "@"))
def cweave(main, fill, t0, dt):
    out = []; k = 0; t = 0; tm = -16
    def adv(m):
        nonlocal t, tm
        if m.cls == "mfma": t = max(t, tm + 16); tm = t
        t += cost(m); out.append(m)
    for i, m in enumerate(main):
        adv(m)
        if i + 1 < len(main) and glued(main[i+1]): continue
        while k < len(fill) and t >= t0 + k*dt:
            for x in fill[k]: adv(x)
            k += 1
    while k < len(fill): out += fill[k]; k += 1
    return out
def singles(g):
    out = []; cur = []
    for i in g:
        cur.append(i)
        if i.cls == "vmem": out.append(cur); cur = []
    if cur: out[-1] = out[-1] + cur
    return out
def slotfill(mf, streams, cap=2):
    n = len(mf); gaps = [[] for _ in range(n)]
    w = lambda g: sum(1 for i in g if i.cls not in ("pseudo", "label"))
    for st in streams:
        k = 0
        for e, g in st:
            k = max(k, int(e))
            while k < n - 1 and gaps[k] and sum(w(x) for x in gaps[k]) + w(g) > cap: k += 1
            k = min(k, n - 1); gaps[k].append(g)
    out = []
    for m, g in zip(mf, gaps):
        out += m if isinstance(m, list) else [m]
        for x in g: out += x
    return out
class St:
    def __init__(self): self.vm = []; self.lg = []; self.hist = []
    def copy(self):
        s = St(); s.vm = list(self.vm); s.lg = list(self.lg); s.hist = list(self.hist); return s
def need(h, c):
    n = 0
    hv = h.cls in ("valu", "trans")
    cv = c.cls in ("valu", "trans")
    if hv:
        vd = {r for r in h.dst if r[0] != "s"}; sd = {r for r in h.dst if r[0] == "s"}
        if c.cls == "mfma" and vd & (c.src | c.srcc): n = max(n, 2)
        if c.cls == "mfma" and ("s", "exec") in sd: n = max(n, 4)
        if h.cls == "trans" and cv and vd & c.src: n = max(n, 1)
        if (c.op.startswith("v_readfirstlane") or c.op.startswith("v_readlane")) and vd & c.src: n = max(n, 1)
        if c.op.startswith("v_permlane") and vd & c.src: n = max(n, 2)
        if "dpp" in c.t and vd & c.src: n = max(n, 2)
        if c.cls == "vmem" and sd & c.src: n = max(n, 5)
        if cv and sd & c.src: n = max(n, 4 if "lane" in c.op else 2)
        if cv and c.op.startswith("v_cndmask") and ("s", "vcc") in sd: n = max(n, 2)
    if h.cls == "mfma":
        if c.cls == "mfma":
            if h.dst & c.src: n = max(n, 8)
            if h.dst & c.srcc and h.dst != c.srcc: n = max(n, 6)
            if h.dst & c.dst and h.dst != c.srcc: n = max(n, 8)
        elif c.cls in ("valu", "trans", "vmem", "ds"):
            if h.dst & (c.src | c.dst): n = max(n, 8)
            if cv and h.srcc & c.dst: n = max(n, 3)
    if h.cls == "salu" and ("s", "m0") in h.dst and ("s", "m0") in c.src and c.cls in ("vmem", "ds"): n = max(n, 1)
    if h.cls == "vmem" and h.wide and (h.wide & c.dst): n = max(n, 2 if cv else 1)
    return n
def resolve(lst, st):
    out = []
    def emit(i):
        if i.cls not in ("label",):
            pad = 0; d = 0
            for h, w in reversed(st.hist):
                if d >= 9: break
                pad = max(pad, need(h, i) - d); d += w
            if pad > 0:
                nop = I(f"s_nop {pad-1}"); out.append(nop); st.hist.append((nop, pad))
            w = int(i.t.split()[1]) + 1 if i.op == "s_nop" else 1
            st.hist.append((i, w)); st.hist = st.hist[-12:]
        out.append(i)
    for i in lst:
        if i.cls == "pseudo":
            q = st.vm if i.op == "@wvm" else st.lg
            tag = i.t.split()[1]
            idx = max((k for k, t in enumerate(q) if t[0] == tag or tag == "*"), default=-1)
            if idx < 0: continue
            n = len(q) - 1 - idx
            if any(t[0] == "SMEM" for t in q): n = 0
            mx = 63 if i.op == "@wvm" else 15
            n = min(n, mx)
            del q[:len(q) - n]
            emit(I(f"s_waitcnt {'vmcnt' if i.op == '@wvm' else 'lgkmcnt'}({n})"))
            continue
        if i.op == "s_waitcnt":
            m = re.search(r"vmcnt\((\d+)\)", i.t)
            if m: del st.vm[:max(0, len(st.vm) - int(m.group(1)))]
            m = re.search(r"lgkmcnt\((\d+)\)", i.t)
            if m: del st.lg[:max(0, len(st.lg) - int(m.group(1)))]
        if i.cls != "label":
            used = i.src | i.dst | i.srcc
            for q in (st.vm, st.lg):
                for t in q:
                    if t[1] & used and not (i.cls in ("vmem",) and q is st.vm and not (t[1] & i.src)) and not (i.cls == "ds" and q is st.lg and not (t[1] & i.src)):
                        raise RuntimeError(f"pending load {t[0]} regs {sorted(t[1] & used, key=str)[:4]} used by: {i.t}")
        if i.cls == "vmem": st.vm.append((i.tag, i.dst))
        if i.cls == "ds": st.lg.append((i.tag, i.dst))
        if i.cls == "smem": st.lg.append(("SMEM", i.dst))
        emit(i)
    return out
def text(lst): return "".join(i.t + "\n" for i in lst)
```

```python
from fw import *
NAME = "gated_mix__ssm_conv_s4__dense_activation_gelu__prompt"
OPT = dict(ts=False, dbg="", DH=4)
HP, W2P, UT, APR, GBUF, FLG = 0, 0x700000, 0xA00000, 0xD00000, 0x1000000, 0x1010000
FLG_H, FLG_U, FLG_P, FLG_A = FLG, FLG + 0x8000, FLG + 0x10000, FLG + 0x18000
class _FS:
    def __index__(s): return OPT.get('FS', 7)
    def __format__(s, f): return str(OPT.get('FS', 7))
    def __add__(s, o): return OPT.get('FS', 7) + o
    def __rlshift__(s, o): return o << OPT.get('FS', 7)
FS = _FS()
DBG = 0x1800000
WSREC = 0x2000000
OOB = 0x7ff00000
TS_OFF = 200 << 20
TAB, STG, RB, GW, RING = 0, 12288, 12288, 30720, 32768
UB, USTR = 32768, 4672
PART, CS = 53248, 16448
RED, AST = 86528, 147968
LDS = 163840
sWV = 3; sX = 4; sW = 8; sWS = 12; sT = 16; sN = 20
sRB = 22; sCT = 23; sPAIR = 24; sRT = 25; sC2 = 26; sCH = 27; sOX = 28; sOW = 29; sA = 30; sB = 31
sK1 = 32; sK0 = 34; sKA = 36
pU, pAre, pLdt, pDsk, pW1, pB1, pW2, pB2, pGw, pOut, pDbg, pWs = 36, 38, 50, 52, 56, 58, 60, 62, 64, 66, 68, 70
sSL = 37; sWO = 72; sHO = 86; sSPIN = 100; sC = 101
sLD = 0
vL, vN, vG = 1, 2, 3
vP1 = 4
vNON = 10
vDX, vDW = 16, 20
vP0 = 36
vW2a, vW2b, vH = 56, 57, 58
vGv, vF0 = 62, 63
vTS = 230
_uid = [0]
def lab(b):
    _uid[0] += 1; return f"{b}{_uid[0]}"
SLOW = []
def ts(p, slot):
    if not OPT["ts"]: return
    p(f"{'s_memtime' if OPT['ts'] == 2 else 's_memrealtime'} s[{sA}:{sA+1}]\ns_waitcnt lgkmcnt(0)\nv_writelane_b32 v{vTS}, s{sA}, {slot}\nv_writelane_b32 v{vTS+1}, s{sA+1}, {slot}")
def w2reg(u): return ar(4*u, 4) if u < 64 else vr(232 + 4*(u-64), 4)
def w2loads(lo, hi):
    g = []
    for u in range(lo, hi):
        j, db = divmod(u, 5)
        if db < 4: g.append([I(f"buffer_load_dwordx4 {w2reg(u)}, v{vW2a}, s[{sWS}:{sWS+3}], s{sWO+j} offen offset:{db*1024} sc1", f"w2_{j}")])
        else: g.append([I(f"buffer_load_dwordx4 {w2reg(u)}, v{vW2b}, s[{sWS}:{sWS+3}], s{sWO+j} offen sc1", f"w2_{j}")])
    return g
def poll_issue(p, vdst, vaddr, tag):
    p(f"buffer_load_dwordx2 v[{vdst}:{vdst+1}], v{vaddr}, s[{sWS}:{sWS+3}], 0 offen sc1", tag)
def poll_check(p, vdst, vaddr, tag):
    ls, lb = lab("slow"), lab("back")
    p.wvm(tag)
    p(f"v_cmp_ne_u64 vcc, v[{vdst}:{vdst+1}], s[{sN}:{sN+1}]\ns_cbranch_vccnz {ls}\n{lb}:")
    SLOW.append(f"""{ls}:
s_mov_b32 s{sSPIN}, 0
{ls}l:
s_sleep {OPT.get("slp", 0)}
buffer_load_dwordx2 v[{vdst}:{vdst+1}], v{vaddr}, s[{sWS}:{sWS+3}], 0 offen sc1
s_add_u32 s{sSPIN}, s{sSPIN}, 1
s_cmp_ge_u32 s{sSPIN}, 0x8000
s_cbranch_scc1 {ls}x
s_waitcnt vmcnt(0)
v_cmp_ne_u64 vcc, v[{vdst}:{vdst+1}], s[{sN}:{sN+1}]
s_cbranch_vccnz {ls}l
{ls}x:
s_waitcnt vmcnt(0)
s_branch {lb}
""")
def flag_store(p, sreg):
    p(f"buffer_store_dwordx2 v[{vNON}:{vNON+1}], v{vF0}, s[{sWS}:{sWS+3}], s{sreg} offen sc1", "flag")
def mod10(p, d, s, t):
    p(f"s_mul_i32 s{t}, s{s}, 6554\ns_lshr_b32 s{t}, s{t}, 16\ns_mul_i32 s{t}, s{t}, 10\ns_sub_u32 s{d}, s{s}, s{t}")
def srd(p, d, ptr, n):
    p(f"s_mov_b32 s{d}, s{ptr}\ns_mov_b32 s{d+1}, s{ptr+1}\ns_mov_b32 s{d+2}, {n}\ns_mov_b32 s{d+3}, 0x20000")

def entry():
    p = P()
    p(f"""s_cmp_ge_u32 s2, 256
    s_cbranch_scc1 L_end
    s_load_dwordx16 s[36:51], s[0:1], 0
    s_load_dwordx16 s[52:67], s[0:1], 64
    s_load_dwordx4 s[68:71], s[0:1], 128""")
    p(f"{'s_memtime' if OPT['ts'] == 2 else 's_memrealtime'} s[{sK1}:{sK1+1}]")
    p(f"""v_lshrrev_b32 v4, 6, v0
    v_and_b32 v{vL}, 63, v0
    v_readfirstlane_b32 s{sWV}, v4
    v_and_b32 v{vN}, 15, v0
    v_bfe_u32 v{vG}, v0, 4, 2
    s_and_b32 s{sA}, s2, 7
    s_lshr_b32 s{sB}, s2, 3
    s_lshr_b32 s{sOX}, s{sA}, 1
    s_and_b32 s{sOW}, s{sA}, 1
    s_lshl_b32 s{sRT}, s{sOX}, 3
    s_lshr_b32 s{sC}, s{sB}, 2
    s_add_u32 s{sRT}, s{sRT}, s{sC}
    s_lshl_b32 s{sC2}, s{sOW}, 2
    s_and_b32 s{sC}, s{sB}, 3
    s_add_u32 s{sC2}, s{sC2}, s{sC}
    s_cmp_ge_u32 s{sB}, 30
    s_cbranch_scc1 L_C
    s_cmp_ge_u32 s{sB}, 24
    s_cbranch_scc1 L_B""")
    return p
def prefetch_code(p, role):
    l = lab("pc")
    p(f"""s_getpc_b64 s[{sN}:{sN+1}]
    {l}:
    v_lshlrev_b32 v4, 7, v0
    v_min_u32 v4, L_{role}_end-{l}-4, v4
    global_load_dword v229, v4, s[{sN}:{sN+1}]""", "pf")
def params_issue(p, role):
    p(f"""s_lshl_b32 s{sC}, s{sPAIR}, 9
    v_lshlrev_b32 v5, 1, v0
    v_add_u32 v12, s{sC}, v5
    s_lshl_b32 s{sC}, s{sPAIR}, 2
    s_waitcnt lgkmcnt(0)""")
    if OPT["ts"]: p(f"v_writelane_b32 v{vTS}, s{sK1}, 0\nv_writelane_b32 v{vTS+1}, s{sK1+1}, 0")
    if role == "A": nonce_pub(p)
    for i in range(6): p(f"global_load_ushort v{vP0+i}, v12, s[{pAre+2*i}:{pAre+2*i+1}]", "par0")
    if role != "A":
        for i in range(6): p(f"global_load_ushort v{vP1+i}, v12, s[{pAre+2*i}:{pAre+2*i+1}] offset:512", "par1")
    p(f"""s_add_u32 s{pLdt}, s{pLdt}, s{sC}
    s_addc_u32 s{pLdt+1}, s{pLdt+1}, 0
    s_add_u32 s{pDsk}, s{pDsk}, s{sC}
    s_addc_u32 s{pDsk+1}, s{pDsk+1}, 0""")
    if role == "A":
        p(f"s_load_dword s0, s[{pLdt}:{pLdt+1}], 0\ns_load_dword s54, s[{pDsk}:{pDsk+1}], 0")
    else:
        p(f"s_load_dwordx2 s[0:1], s[{pLdt}:{pLdt+1}], 0\ns_load_dwordx2 s[54:55], s[{pDsk}:{pDsk+1}], 0")
    srd(p, sWS, pWs, WSREC)
def nonce_pub(p):
    l = lab("np")
    p(f"""s_or_b32 s{sSPIN}, s2, s{sWV}
    s_cmp_lg_u32 s{sSPIN}, 0
    s_cbranch_scc1 {l}
    v_mov_b32 v13, 0
    s_or_b32 s{sK1+1}, s{sK1+1}, 0x40000000
    v_mov_b32 v14, s{sK1}
    v_mov_b32 v15, s{sK1+1}
    s_mov_b64 exec, 1
    global_store_dwordx2 v13, v[14:15], s[{pDbg}:{pDbg+1}] sc1
    s_mov_b64 exec, -1
    {l}:""")
def nonce_issue(p):
    p(f"v_mov_b32 v13, 0\nglobal_load_dwordx2 v[{vNON}:{vNON+1}], v13, s[{pDbg}:{pDbg+1}] sc1", "non")
def nonce_check(p):
    ls, lb = lab("slow"), lab("back")
    p.wvm("non")
    p(f"""v_readfirstlane_b32 s{sN+1}, v{vNON+1}
    v_readfirstlane_b32 s{sN}, v{vNON}
    s_cmp_eq_u32 s{sN+1}, 0
    s_cbranch_scc1 {ls}
    {lb}:""")
    SLOW.append(f"""{ls}:
s_mov_b32 s{sSPIN}, 0
v_mov_b32 v13, 0
{ls}l:
global_load_dwordx2 v[{vNON}:{vNON+1}], v13, s[{pDbg}:{pDbg+1}] sc1
s_add_u32 s{sSPIN}, s{sSPIN}, 1
s_waitcnt vmcnt(0)
v_readfirstlane_b32 s{sN+1}, v{vNON+1}
v_readfirstlane_b32 s{sN}, v{vNON}
s_cmp_ge_u32 s{sSPIN}, 0x8000
s_cbranch_scc1 {ls}x
s_cmp_eq_u32 s{sN+1}, 0
s_cbranch_scc1 {ls}l
{ls}x:
s_nop 4
s_branch {lb}
""")
def g2_offsets():
    p = P()
    p(f"""s_and_b32 s42, s{sSL}, 3
    s_mul_i32 s42, s42, {OPT.get("r2a", 3)}
    s_lshr_b32 s43, s{sSL}, 2
    s_mul_i32 s43, s43, {OPT.get("r2b", 5)}
    s_add_u32 s42, s42, s43
    s_mul_i32 s43, s42, 5042
    s_lshr_b32 s43, s43, 16
    s_mul_i32 s43, s43, 13
    s_sub_u32 s42, s42, s43
    s_mul_i32 s43, s{sWV}, 14
    s_cmp_eq_u32 s{sWV}, 3
    s_cselect_b32 s44, 1, 0
    s_sub_u32 s43, s43, s44
    s_cmp_lt_u32 s{sWV}, 2
    s_cselect_b32 s44, 14, 13
    s_add_u32 s44, s44, s43
    s_add_u32 s42, s42, s43
    s_mul_i32 s45, s{sC2}, {54*5120}
    s_add_u32 s45, s45, {W2P}
    s_mul_i32 s46, s{sRT}, {54*4096}""")
    for j in range(14):
        p(f"""s_mul_i32 s{sWO+j}, s42, 5120
        s_add_u32 s{sWO+j}, s{sWO+j}, s45
        s_lshl_b32 s{sHO+j}, s42, 12
        s_add_u32 s{sHO+j}, s{sHO+j}, s46""")
        if j < 13: p(f"s_add_u32 s42, s42, 1\ns_cmp_eq_u32 s42, s44\ns_cselect_b32 s42, s43, s42")
    p(f"""s_cmp_lt_u32 s{sWV}, 2
    s_cselect_b32 s{sWO+13}, s{sWO+13}, {OOB}
    s_cselect_b32 s{sHO+13}, s{sHO+13}, {OOB}""")
    g = []
    for i in p.l:
        if g and glued(i): g[-1].append(i)
        else: g.append([i])
    return g
def common_v():
    p = P()
    p(f"""v_cmp_eq_u32 vcc, 0, v0
    v_mov_b32 v{vF0}, {OOB}
    v_lshlrev_b32 v{vW2a}, 4, v{vL}
    v_cndmask_b32 v{vF0}, v{vF0}, 0, vcc
    v_add_u32 v{vW2b}, 4096, v{vW2a}""")
    for s in range(4):
        p(f"s_xor_b32 s{sC}, s{sWV}, {s}\ns_lshl_b32 s{sC}, s{sC}, 10\nv_add_u32 v{vH+s}, s{sC}, v{vW2a}")
    return p

def delay_ds(l, n):
    out = []; q = []
    for i in l:
        if i.tag == "stw" and i.cls == "ds": q.append([i, n]); continue
        if i.op.startswith("ds_read"): out += [x[0] for x in q]; q = []
        while any(x[0].src & i.dst for x in q): out.append(q.pop(0)[0])
        out.append(i)
        for x in q: x[1] -= 1
        if q and q[0][1] <= 0: out.append(q.pop(0)[0])
    return out + [x[0] for x in q]
def cmul(p, d, a, b):
    p(f"v_pk_mul_f32 v[{d}:{d+1}], v[{a}:{a+1}], v[{b}:{b+1}] op_sel:[0,0] op_sel_hi:[0,1]")
    p(f"v_pk_fma_f32 v[{d}:{d+1}], v[{a}:{a+1}], v[{b}:{b+1}], v[{d}:{d+1}] op_sel:[1,1,0] op_sel_hi:[1,0,1] neg_lo:[1,0,0]")
def kgen(par, sld, sdsk, fill, t0, dt, pre_bar=None, post_bar=None, tid=0):
    p = P()
    E = 64
    F = 80
    Bc, E8, W = 112, 116, 118
    AL, BE, DT, T0, T1, T2, T3 = 120, 121, 122, 123, 124, 125, 126
    CV = 128
    TM = 136
    BF, AF, ACC = 144, 160, 176
    vSW, vSR, vA0, vA1, vA2, vA3 = 188, 189, 190, 191, 224, 225
    Ek = lambda k: E + 2*(k-1)
    Fk = lambda k: F + 2*(k-1)
    p(f"""s_lshr_b32 s{sC}, s{sWV}, 1
    s_lshl_b32 s{sC}, s{sC}, 4
    s_lshr_b32 s{sld}, s{sld}, s{sC}
    s_lshl_b32 s{sld}, s{sld}, 16
    s_lshr_b32 s{sdsk}, s{sdsk}, s{sC}
    s_lshl_b32 s{sdsk}, s{sdsk}, 16
    v_mov_b32 v{DT}, 0x3fb8aa3b
    v_mul_f32 v{DT}, s{sld}, v{DT}
    s_mul_i32 s{sC}, s{sWV}, 4608
    v_exp_f32 v{DT}, v{DT}
    s_add_u32 s{sC}, s{sC}, {STG}
    v_lshl_add_u32 v{vSW}, v{vL}, 2, s{sC}
    {f"s_mov_b32 m0, s{sC}" if tid else ""}
    v_cvt_pk_bf16_f32 v{DT}, v{DT}, v{DT}
    v_mul_u32_u24 v{vSR}, 288, v{vN}
    v_lshlrev_b32 v{DT}, 16, v{DT}
    v_lshl_add_u32 v{vSR}, v{vG}, 4, v{vSR}
    v_add_u32 v{vSR}, s{sC}, v{vSR}""")
    p.wvm("par0"); p.wvm("par1")
    for i in range(6): p(f"v_lshlrev_b32 v{par+i}, 16, v{par+i}")
    p(f"""v_mul_f32 v{AL}, v{DT}, v{par}
    v_mul_f32 v{BE}, v{DT}, v{par+1}
    v_mul_f32 v{AL}, 0x3fb8aa3b, v{AL}
    v_mul_f32 v{BE}, 0x3e22f983, v{BE}
    v_mul_f32 v{T0}, 0x41000000, v{AL}
    v_mul_f32 v{T1}, 0xc1000000, v{BE}
    v_exp_f32 v{T0}, v{T0}
    v_fract_f32 v{T1}, v{T1}
    v_mul_f32 v{par+2}, v{DT}, v{par+2}
    v_cos_f32 v{E8}, v{T1}
    v_sin_f32 v{E8+1}, v{T1}
    v_mul_f32 v{par+3}, v{DT}, v{par+3}
    v_pk_mul_f32 v[{E8}:{E8+1}], v[{E8}:{E8+1}], v[{T0-1}:{T0}] op_sel:[0,1] op_sel_hi:[1,1]""")
    p(f"""v_mul_f32 v{Bc}, v{par+4}, v{par+2}
    v_mul_f32 v{Bc+1}, v{par+4}, v{par+3}
    v_fma_f32 v{Bc}, -v{par+5}, v{par+3}, v{Bc}
    v_fma_f32 v{Bc+1}, -v{par+5}, v{par+2}, -v{Bc+1}""")
    cvi = [0]
    def put(row, reg):
        c = CV + cvi[0] % 8; cvi[0] += 1
        p(f"v_cvt_pk_bf16_f32 v{c}, v{reg}, v{reg+1}")
        if "w" in OPT.get("x3", ""): return
        if tid: p(f"ds_write_addtid_b32 v{c} offset:{row*288}", "stw")
        else: p(f"ds_write_b32 v{vSW}, v{c} offset:{row*288}", "stw")
    def expk(d, k):
        q = P()
        q(f"""v_mul_f32 v{T2}, {k}, v{AL}
        v_mul_f32 v{T3}, {k}, v{BE}
        v_exp_f32 v{T2}, v{T2}
        v_fract_f32 v{T3}, v{T3}
        v_cos_f32 v{d}, v{T3}
        v_sin_f32 v{d+1}, v{T3}
        s_nop 0
        v_pk_mul_f32 v[{d}:{d+1}], v[{d}:{d+1}], v[{T2-1}:{T2}] op_sel:[0,1] op_sel_hi:[1,1]""")
        return q
    assert T0 % 2 == 1 and T2 % 2 == 1
    cur = Bc
    for j in range(16):
        put(j, cur)
        if j < 15:
            nx = Bc + 2 if cur == Bc else Bc
            cmul(p, nx, cur, E8); cur = nx
    for ks in range(4): p(f"ds_read_b128 v[{BF+4*ks}:{BF+4*ks+3}], v{vSR} offset:{64*ks}", "bf")
    p.ext(expk(Ek(1), "1.0")); p.ext(expk(Fk(1), "0x43000000"))
    p(f"v_mov_b32 v{CV+7}, 0x3f80"); p(f"ds_write_b32 v{vSW}, v{CV+7}", "stw")
    put(1, Ek(1)); put(8, Fk(1))
    for k, (a, b) in {2: (1, 1), 3: (2, 1), 4: (2, 2), 5: (4, 1), 6: (4, 2), 7: (4, 3)}.items():
        cmul(p, Ek(k), Ek(a), Ek(b)); put(k, Ek(k))
    tm = [0]
    def prod(row, a, b):
        t = TM + 2*(tm[0] % 4); tm[0] += 1
        cmul(p, t, a, b); put(row, t)
    for k in range(1, 8): prod(8 + k, Fk(1), Ek(k))
    def rdA():
        for ks in range(4): p(f"ds_read_b128 v[{AF+4*ks}:{AF+4*ks+3}], v{vSR} offset:{64*ks}", "af")
    def mm(blk):
        p.wlg("af")
        for ks in range(4):
            p(f"v_mfma_f32_16x16x32_bf16 v[{ACC+4*blk}:{ACC+4*blk+3}], v[{AF+4*ks}:{AF+4*ks+3}], v[{BF+4*ks}:{BF+4*ks+3}], " + ("0" if ks == 0 else f"v[{ACC+4*blk}:{ACC+4*blk+3}]"))
    rdA()
    for k, (a, b) in {2: (1, 1), 3: (2, 1), 4: (2, 2), 5: (4, 1), 6: (4, 2), 7: (4, 3), 8: (4, 4)}.items(): cmul(p, Fk(k), Fk(a), Fk(b))
    mm(0)
    for i, f in enumerate((2, 3)):
        put(4*i, Fk(f))
        for u, e in enumerate((2, 4, 6)): prod(4*i + 1 + u, Fk(f), Ek(e))
    for i, f in enumerate((4, 5, 6, 7)):
        put(8 + 2*i, Fk(f)); prod(9 + 2*i, Fk(f), Ek(4))
    rdA()
    for k in range(9, 17): cmul(p, Fk(k), Fk(8), Fk(k-8))
    mm(1)
    for k in range(8, 17): put(k - 8, Fk(k))
    rdA()
    p(f"""s_mul_i32 s{sC}, s{sWV}, 3072
    v_lshrrev_b32 v{T0}, 1, v{vG}
    v_and_b32 v{T1}, 1, v{vG}
    v_lshlrev_b32 v{vA0}, 9, v{T0}
    v_lshl_add_u32 v{vA0}, v{vN}, 5, v{vA0}
    v_lshl_add_u32 v{vA0}, v{T1}, 4, v{vA0}
    v_add_u32 v{vA0}, s{sC}, v{vA0}
    v_sub_u32 v{T1}, 4, v{T0}
    v_lshlrev_b32 v{vA1}, v{T1}, v{vN}
    v_lshl_add_u32 v{vA3}, v{vG}, 8, s{sC}
    v_add_u32 v{vA1}, v{vA1}, v{vA3}
    v_mul_u32_u24 v{T0}, 120, v{T0}
    v_add3_u32 v{vA2}, v{vA1}, v{T0}, 8
    v_lshl_add_u32 v{vA3}, v{vN}, 2, v{vA3}""")
    mm(2)
    p(f"ds_write_b128 v{vA0}, v[{ACC}:{ACC+3}]", "tw")
    p(f"ds_write_b64 v{vA1}, v[{ACC+4}:{ACC+5}] offset:1024", "tw")
    p(f"ds_write_b64 v{vA2}, v[{ACC+6}:{ACC+7}] offset:1024", "tw")
    for i in range(4): p(f"ds_write_b32 v{vA3}, v{ACC+8+i} offset:{2048+64*i}", "tw")
    p.l = delay_ds(p.l, OPT.get("dly", 3))
    if OPT.get('v'): print('kgen body', tlen(p.l), len(fill))
    body = cweave(p.l, fill, t0, dt)
    p = P(); p.ext(body)
    if OPT.get("x2"): ts(p, 8)
    vT, vR, X, Y, Z, O = 64, 65, 66, 68, 76, 84
    X2, Y2, Z2 = 67, 72, 80
    vA, vBb = 92, 93
    if pre_bar: p.ext(pre_bar)
    p(f"""s_lshr_b32 s{sC}, s{sWV}, 1
    s_mul_i32 s{sSPIN}, s{sC}, 6144
    s_mul_i32 s{sC}, s{sC}, 8320
    s_add_u32 s{sC}, s{sC}, {RB + 4080}
    v_lshlrev_b32 v{vR}, 4, v{vL}
    v_sub_u32 v{vR}, s{sC}, v{vR}
    s_and_b32 s{sC}, s{sWV}, 1
    s_lshl_b32 s{sC}, s{sC}, 8
    s_add_u32 s{sC}, s{sC}, s{sSPIN}
    v_lshl_add_u32 v{vT}, v{vL}, 2, s{sC}""")
    p("s_waitcnt lgkmcnt(0)\ns_barrier")
    if post_bar: p.ext(post_bar)
    S0, S1, S2, S3 = 94, 95, 96, 97
    p(f"ds_read_b32 v{S0}, v{vT} offset:2048\nds_read_b32 v{S1}, v{vT} offset:2052\nds_read_b32 v{S2}, v{vT} offset:{2048+3072}\nds_read_b32 v{S3}, v{vT} offset:{2052+3072}", "s3")
    l1, l2 = lab("ex"), lab("ex")
    p(f"s_bitcmp1_b32 s{sWV}, 0\ns_cbranch_scc1 {l1}")
    p(f"""v_cmp_gt_u32 vcc, 32, v{vL}
    v_lshlrev_b32 v{vA}, 5, v{vL}
    v_lshl_add_u32 v{vBb}, v{vL}, 4, 0x200
    v_cndmask_b32 v{vBb}, v{vBb}, v{vA}, vcc
    v_cmp_ge_u32 vcc, 32, v{vL}
    v_add_u32 v{vA}, -4, v{vA}
    v_max_i32 v{vA}, 0, v{vA}
    v_cndmask_b32 v{vA}, v{vBb}, v{vA}, vcc
    v_add_u32 v{vBb}, s{sSPIN}, v{vBb}
    v_add_u32 v{vA}, s{sSPIN}, v{vA}""".replace("4, 0x200", f"4, s{sA}").replace(f"v_cmp_gt_u32 vcc, 32, v{vL}", f"s_movk_i32 s{sA}, 0x200\nv_cmp_gt_u32 vcc, 32, v{vL}"))
    p(f"""ds_read_b128 v[{Y}:{Y+3}], v{vBb}
    ds_read_b128 v[{Y2}:{Y2+3}], v{vBb} offset:3072
    ds_read_b128 v[{Z}:{Z+3}], v{vBb} offset:16
    ds_read_b128 v[{Z2}:{Z2+3}], v{vBb} offset:3088
    ds_read_b32 v{X}, v{vA}
    ds_read_b32 v{X2}, v{vA} offset:3072""", "p0")
    p(f"""v_cmp_eq_u32 vcc, 0, v{vL}
    v_mov_b32 v{vA}, s{sdsk}
    s_mov_b32 s{sA}, 0
    s_mov_b32 s{sA+1}, -1
    v_cndmask_b32 v{vA}, 0, v{vA}, vcc
    s_waitcnt lgkmcnt(0)
    v_pk_add_f32 v[{Y}:{Y+1}], v[{Y}:{Y+1}], v[{Y2}:{Y2+1}]
    v_pk_add_f32 v[{Y+2}:{Y+3}], v[{Y+2}:{Y+3}], v[{Y2+2}:{Y2+3}]
    v_pk_add_f32 v[{Z}:{Z+1}], v[{Z}:{Z+1}], v[{Z2}:{Z2+1}]
    v_pk_add_f32 v[{Z+2}:{Z+3}], v[{Z+2}:{Z+3}], v[{Z2+2}:{Z2+3}]
    v_add_f32 v{X}, v{X}, v{X2}
    v_cndmask_b32 v{X}, v{X}, 0, vcc""")
    D = [Y, Y2, Y2+1, Y2+2, Y2+3, Z2, Z2+1, Z2+2]
    s0 = [None, Y+1, Y+2, Y+3, Z, Z+1, Z+2, Z+3]; s1 = [None, Y, Y+1, Y+2, Y+2, Y+2, Y+3, Z]
    for k in range(1, 8): p(f"v_cndmask_b32 v{D[k]}, v{s0[k]}, v{s1[k]}, s[{sA}:{sA+1}]")
    p(f"v_add_f32 v{Y}, v{Y}, v{vA}")
    def packs(d, dm1):
        for i in range(4): p(f"v_cvt_pk_bf16_f32 v{O+i}, v{d[7-2*i]}, v{d[6-2*i]}")
        for i in range(4): p(f"v_cvt_pk_bf16_f32 v{O+4+i}, v{d[6-2*i]}, v{d[5-2*i] if i < 3 else dm1}")
    packs(D, X)
    p(f"ds_write_b128 v{vR}, v[{O}:{O+3}]\nds_write_b128 v{vR}, v[{O+4}:{O+7}] offset:4160\nv_add_u32 v{vR}, -2048, v{vR}\ns_branch {l2}\n{l1}:")
    p(f"v_lshl_add_u32 v{vA}, v{vL}, 3, s{sSPIN}")
    p(f"""ds_read_b64 v[{Y}:{Y+1}], v{vA} offset:1536
    ds_read_b64 v[{Y2}:{Y2+1}], v{vA} offset:{1536+3072}
    ds_read_b32 v{Y+2}, v{vA} offset:1544
    ds_read_b32 v{Y2+2}, v{vA} offset:{1544+3072}""", "p1")
    p(f"""v_and_b32 v{vBb}, 1, v{vL}
    v_bfe_u32 v{X}, v{vL}, 1, 1
    v_mul_u32_u24 v{vBb}, 4160, v{vBb}
    s_lshr_b32 s{sC}, s{sWV}, 1
    s_mul_i32 s{sC}, s{sC}, 8320
    v_lshl_add_u32 v{vBb}, v{X}, 4, v{vBb}
    v_mov_b32 v{Z}, 0
    v_mov_b32 v{Z+1}, 0
    v_mov_b32 v{Z+2}, 0
    v_mov_b32 v{Z+3}, 0
    v_add_u32 v{vBb}, s{sC}, v{vBb}
    v_add_u32 v{vR}, -1024, v{vR}
    ds_write_b128 v{vBb}, v[{Z}:{Z+3}] offset:{RB+4096}
    s_waitcnt lgkmcnt(0)
    v_pk_add_f32 v[{Y}:{Y+1}], v[{Y}:{Y+1}], v[{Y2}:{Y2+1}]
    v_add_f32 v{Y+2}, v{Y+2}, v{Y2+2}""")
    packs([Y, Y, Y, Y+1, Y+1, Y+1, Y+2, Y+2], Y)
    p(f"ds_write_b128 v{vR}, v[{O}:{O+3}]\nds_write_b128 v{vR}, v[{O+4}:{O+7}] offset:4160\nv_add_u32 v{vR}, -2048, v{vR}\n{l2}:")
    p(f"""v_and_b32 v{X}, 1, v{vL}
    v_add_f32 v{S0}, v{S0}, v{S2}
    v_cmp_eq_u32 vcc, 1, v{X}
    v_add_f32 v{S1}, v{S1}, v{S3}
    s_nop 0
    v_cndmask_b32 v{S2}, v{S0}, v{S1}, vcc""")
    O = 98
    packs([S0, S0, S0, S0, S2, S1, S1, S1], S0)
    p(f"ds_write_b128 v{vR}, v[{O}:{O+3}]\nds_write_b128 v{vR}, v[{O+4}:{O+7}] offset:4160", "rw")
    return p
```

```python
from gen1 import *
sMX, sMW, sGC, sUS, sT1, sT2 = 47, 48, 49, 50, 51, 52
ACC1 = 64; FX = (128, 160); FW = (144, 176); BIAS = 192; GACC = 208; GF = (224, 4)
vXA, vWA = 24, 28
def dma_x(step):
    g = [I(f"s_add_u32 m0, s{sMX}, {(step & 3)*32768}")]
    for i in range(4): g.append(I(f"buffer_load_dwordx4 v{vDX+i}, s[{sX}:{sX+3}], s{sOX} offen offset:{i*1024} lds", f"st{step}"))
    return g
def dma_w(step, nw):
    g = [I(f"s_add_u32 m0, s{sMW}, {(step & 3)*32768}")]
    for i in range(nw): g.append(I(f"buffer_load_dwordx4 v{vDW+i}, s[{sW}:{sW+3}], s{sOW} offen offset:{i*1024} lds", f"st{step}"))
    g += P()(f"""s_add_u32 s{sCH}, s{sCH}, 1
    s_cmp_eq_u32 s{sCH}, 10
    s_cselect_b32 s{sCH}, 0, s{sCH}
    s_lshl_b32 s{sOX}, s{sCH}, 7
    s_mul_i32 s{sOW}, s{sCH}, 221184""").l
    return g
def g1_setup(role):
    p = P(); nw = 4 if role == "A" else 2
    srd(p, sX, pU, 2048*1280); srd(p, sW, pW1, 640*3456)
    p(f"""s_lshl_b32 s{sOX}, s{sCH}, 7
    s_mul_i32 s{sOW}, s{sCH}, 221184
    s_lshl_b32 s{sMX}, s{sWV}, 12
    s_add_u32 s{sMX}, s{sMX}, {RING}
    s_lshl_b32 s{sMW}, s{sWV}, {12 if role == "A" else 11}
    s_add_u32 s{sMW}, s{sMW}, {RING + 16384}
    s_lshl_b32 s{sC}, s{sRB}, 2
    s_add_u32 s{sC}, s{sC}, s{sWV}
    s_mul_i32 s{sC}, s{sC}, {32*1280}
    v_lshrrev_b32 v64, 3, v{vL}
    v_and_b32 v65, 7, v{vL}
    v_xor_b32 v66, v64, v65
    v_mul_u32_u24 v67, 1280, v64
    v_lshl_add_u32 v67, v66, 4, v67
    v_add_u32 v{vDX}, s{sC}, v67""")
    for i in range(1, 4): p(f"v_add_u32 v{vDX+i}, {i*9216}, v{vDX}")
    p(f"s_mul_i32 s{sC}, s{sWV}, {16*3456}")
    if role == "A":
        p(f"""s_lshl_b32 s{sSPIN}, s{sCT}, 8
        s_add_u32 s{sC}, s{sC}, s{sSPIN}
        v_mul_u32_u24 v67, 3456, v{vG}
        v_and_b32 v64, 1, v{vL}
        v_lshl_add_u32 v67, v64, 4, v67
        v_add_u32 v67, s{sC}, v67
        v_lshrrev_b32 v65, 1, v{vN}
        v_xor_b32 v65, v65, v{vG}
        v_xor_b32 v66, 4, v65
        v_lshl_add_u32 v{vDW}, v65, 5, v67
        v_lshl_add_u32 v{vDW+2}, v66, 5, v67
        v_add_u32 v{vDW+1}, {4*3456-1024}, v{vDW}
        v_add_u32 v{vDW+3}, {3*(4*3456-1024)}, v{vDW+2}
        v_add_u32 v{vDW+2}, {2*(4*3456-1024)}, v{vDW+2}""")
    else:
        p(f"""s_lshl_b32 s{sSPIN}, s{sCT}, 7
        s_add_u32 s{sC}, s{sC}, s{sSPIN}
        s_add_u32 s{sC}, s{sC}, 3072
        v_mul_u32_u24 v67, 3456, v64
        v_and_b32 v64, 1, v{vL}
        v_lshl_add_u32 v67, v64, 4, v67
        v_add_u32 v67, s{sC}, v67
        v_lshrrev_b32 v65, 1, v65
        v_and_b32 v64, 1, v{vG}
        v_xor_b32 v65, v65, v64
        v_xor_b32 v66, 2, v65
        v_lshl_add_u32 v{vDW}, v65, 5, v67
        v_lshl_add_u32 v{vDW+1}, v66, 5, v67
        v_add_u32 v{vDW+1}, {8*3456-1024}, v{vDW+1}""")
    return p
def g1_bias_issue(role):
    p = P(); nfb = 4 if role == "A" else 2
    if role == "A": p(f"s_lshl_b32 s{sC}, s{sCT}, 8\ns_and_b32 s{sSPIN}, s{sWV}, 1\ns_lshl_b32 s{sSPIN}, s{sSPIN}, 7\ns_add_u32 s{sC}, s{sC}, s{sSPIN}")
    else: p(f"s_lshl_b32 s{sC}, s{sCT}, 7\ns_and_b32 s{sSPIN}, s{sWV}, 1\ns_lshl_b32 s{sSPIN}, s{sSPIN}, 6\ns_add_u32 s{sC}, s{sC}, s{sSPIN}\ns_add_u32 s{sC}, s{sC}, 3072")
    p(f"v_lshl_add_u32 v42, v{vG}, 3, s{sC}")
    for fb in range(nfb): p(f"global_load_dwordx2 v[{BIAS+8+2*fb}:{BIAS+9+2*fb}], v42, s[{pB1}:{pB1+1}] offset:{32*fb}", "bias")
    return p
def unpack(p, dst, raw, n):
    for i in range(n):
        p(f"""v_lshlrev_b32 v{dst+4*i}, 16, v{raw+2*i}
        v_and_b32 v{dst+4*i+1}, 0xffff0000, v{raw+2*i}
        v_lshlrev_b32 v{dst+4*i+2}, 16, v{raw+2*i+1}
        v_and_b32 v{dst+4*i+3}, 0xffff0000, v{raw+2*i+1}""")
def g1_addr(role):
    p = P(); nfb = 4 if role == "A" else 2
    p.wvm("bias")
    unpack(p, BIAS, BIAS + 8, nfb)
    p(f"""s_lshr_b32 s{sC}, s{sWV}, 1
    s_lshl_b32 s{sC}, s{sC}, 13
    s_add_u32 s{sC}, s{sC}, {RING}
    v_and_b32 v64, 7, v{vN}
    v_xor_b32 v64, v64, v{vG}
    v_lshl_add_u32 v65, v{vN}, 7, s{sC}
    v_lshl_add_u32 v{vXA}, v64, 4, v65
    v_xor_b32 v{vXA+1}, 64, v{vXA}
    v_add_u32 v{vXA+2}, 0x10000, v{vXA}
    v_add_u32 v{vXA+3}, 0x10000, v{vXA+1}
    v_bfe_u32 v66, v{vL}, 2, 2
    v_and_b32 v67, 3, v{vL}
    v_and_b32 v68, 1, v{vG}
    v_lshl_add_u32 v69, v{vG}, 3, v66
    s_and_b32 s{sC}, s{sWV}, 1""")
    if role == "A":
        p(f"""v_lshl_or_b32 v70, v68, 2, v66
        s_lshl_b32 s{sC}, s{sC}, 2
        v_lshlrev_b32 v69, 8, v69""")
    else:
        p(f"""v_lshrrev_b32 v70, 1, v66
        v_lshl_or_b32 v70, v68, 1, v70
        s_lshl_b32 s{sC}, s{sC}, 1
        v_lshlrev_b32 v69, 7, v69""")
    p(f"""v_xor_b32 v70, s{sC}, v70
    v_lshl_add_u32 v69, v67, 3, v69
    v_add_u32 v69, {RING+16384}, v69""")
    for fb in range(nfb):
        p(f"v_xor_b32 v71, {fb}, v70\nv_lshl_add_u32 v{vWA+fb}, v71, 5, v69\nv_add_u32 v{vWA+4+fb}, 0x10000, v{vWA+fb}")
    return p
def ut_setup():
    p = P()
    p(f"""s_lshl_b32 s{sC}, s{sWV}, 12
    s_add_u32 s{sC}, s{sC}, {RING}
    v_bfe_u32 v66, v{vL}, 2, 2
    v_and_b32 v67, 3, v{vL}
    v_lshl_add_u32 v69, v{vG}, 3, v66
    v_lshl_add_u32 v69, v69, 7, s{sC}
    v_and_b32 v71, 1, v{vL}
    v_lshl_add_u32 v69, v71, 3, v69
    v_lshrrev_b32 v71, 1, v67
    v_xor_b32 v71, v71, v66""")
    for k in range(4): p(f"v_xor_b32 v72, {2*k}, v71\nv_lshl_add_u32 v{52+k}, v72, 4, v69")
    p(f"""v_lshlrev_b32 v69, 14, v66
    v_lshl_add_u32 v69, v67, 4, v69
    v_lshl_add_u32 v69, v{vG}, 6, v69
    s_lshl_b32 s{sC}, s{sWV}, 8
    v_add_u32 v8, s{sC}, v69""")
    return p
def ut_xfer():
    g = [[]]
    for db in range(4):
        for h in range(2): g[0].append(I(f"ds_read_b64_tr_b16 a[{20+4*db+2*h}:{21+4*db+2*h}], v{52+(db ^ (2*h))} offset:{512*h}", f"ut{db}"))
    for db in range(4):
        g.append([I(f"@wlg ut{db}"), I(f"s_add_u32 s{sT1}, s{sUS}, {db*65536}"), I(f"buffer_store_dwordx4 a[{20+4*db}:{23+4*db}], v8, s[{sWS}:{sWS+3}], s{sT1} offen sc1", "uts")])
    return g
def frag_reads(role, step, ks, gate):
    nfb = 4 if role == "A" else 2
    hi = (step & 3) >> 1; lo = (step & 1) * 32768
    kso, ho = (8192, 1024) if role == "A" else (4096, 512)
    r = []
    def w(fb):
        for h in range(2): r.append([I(f"ds_read_b64_tr_b16 v[{FW[ks]+4*fb+2*h}:{FW[ks]+4*fb+2*h+1}], v{vWA+4*hi+fb} offset:{lo+ks*kso+h*ho}", f"f{ks}w{fb}")])
    def x(tb): r.append([I(f"ds_read_b128 v[{FX[ks]+4*tb}:{FX[ks]+4*tb+3}], v{vXA+2*hi+ks} offset:{lo+tb*2048}", f"f{ks}x{tb}")])
    w(0)
    for tb in range(4): x(tb)
    for fb in range(1, nfb): w(fb)
    if 'r' in OPT.get('x1', '') and step > 0: r = []
    if gate: r.append([I(f"ds_read_b128 v[{GF[ks]}:{GF[ks]+3}], v228 offset:{64*ks}", f"f{ks}")])
    return r
def mfmas(role, step, ks, gate):
    nfb = 4 if role == "A" else 2
    m = []
    first = step == 0 and ks == 0
    if 'm' in OPT.get('x1', '') and step > 0: return [I("s_nop 0") for _ in range(4*nfb)]
    for fb in range(nfb):
        for tb in range(4):
            a = ACC1 + (fb*4 + tb)*4
            c = f"v[{BIAS+4*fb}:{BIAS+4*fb+3}]" if first else f"v[{a}:{a+3}]"
            m.append(I(f"v_mfma_f32_16x16x32_bf16 v[{a}:{a+3}], v[{FW[ks]+4*fb}:{FW[ks]+4*fb+3}], v[{FX[ks]+4*tb}:{FX[ks]+4*tb+3}], {c}"))
    if gate:
        for tb in range(4):
            a = GACC + 4*tb
            m.append(I(f"v_mfma_f32_16x16x32_bf16 v[{a}:{a+3}], v[{GF[ks]}:{GF[ks]+3}], v[{FX[ks]+4*tb}:{FX[ks]+4*tb+3}], " + ("0" if first else f"v[{a}:{a+3}]")))
    return m
def fine(g):
    out = []
    for i in g:
        if out and glued(i): out[-1].append(i)
        else: out.append([i])
    return out
def gemm1(role, sched):
    p = P(); nw = 4 if role == "A" else 2; gate = False
    nm = 4*nw; cap = OPT.get("cap", 2)
    BP = OPT.get("BP", 4) if role == "A" else 2
    items = []
    def place(g0, g, sp):
        c = 0; e = g0 - 1
        for x in g:
            if x[0].cls == "vmem": e = g0 + c*sp; c += 1
            items.append((e, x))
    if 'd' not in OPT.get('x1', ''):
        place(1, fine(dma_w(3, nw)), 4)
        for s in range(6): place((2*s+1)*nm + BP, fine(dma_x(s + 4)) + fine(dma_w(s + 4, nw)), 2*nm/(4 + nw))
    ex = []
    for hs, d in sorted(sched.items()): ex += [(hs*nm + 2 + k*nm/len(d), g) for k, g in enumerate(d)]
    p.wvm("st0"); p("s_waitcnt lgkmcnt(0)\ns_barrier")
    if role == "A": ts(p, 5)
    for g in frag_reads(role, 0, 0, gate): p.ext(g)
    mf = []; rd = []
    for hs in range(20):
        step, ks = hs >> 1, hs & 1
        m = [[i] for i in mfmas(role, step, ks, gate)]
        for k in range(nm):
            w = []
            if k % 4 == 0: w.append(I(f"@wlg f{ks}w{k//4}" if k else f"@wlg f{ks}x3"))
            m[k] = w + m[k]
        if ks == 1:
            q = P()
            if step < 9: q.wvm(f"st{step+1}")
            q("s_waitcnt lgkmcnt(0)")
            if 'b' not in OPT.get('x1', ''): q("s_barrier")
            if role == "A" and step in (2, 5): ts(q, 6 + (step > 2))
            m[BP] = q.l + m[BP]
            if step < 9: rd += [(hs*nm + BP + k*(nm - BP)/len(r), g) for r in [frag_reads(role, step + 1, 0, gate)] for k, g in enumerate(r)]
        else: rd += [(hs*nm + OPT.get("R0", 1) + k*(nm - BP)/len(r), g) for r in [frag_reads(role, step, 1, gate)] for k, g in enumerate(r)]
        mf += m
    p.ext(slotfill(mf, [rd, items, ex], cap if role == "A" else 3))
    return p
def gelu(role, fill, fill2=[]):
    p = P(); ns = 2 if role == "A" else 1
    pre = P()
    pre(f"""s_lshl_b32 s{sUS}, s{sRB}, 1
    s_lshr_b32 s{sC}, s{sWV}, 1
    s_add_u32 s{sUS}, s{sUS}, s{sC}
    s_mul_i32 s{sUS}, s{sUS}, 221184
    s_and_b32 s{sC}, s{sWV}, 1""")
    if role == "A": pre(f"s_lshl_b32 s{sC}, s{sC}, 13\ns_add_u32 s{sUS}, s{sUS}, s{sC}\ns_lshl_b32 s{sC}, s{sCT}, 14\ns_add_u32 s{sUS}, s{sUS}, s{sC}")
    else: pre(f"s_lshl_b32 s{sC}, s{sC}, 12\ns_add_u32 s{sUS}, s{sUS}, s{sC}\ns_lshl_b32 s{sC}, s{sCT}, 13\ns_add_u32 s{sUS}, s{sUS}, s{sC}\ns_add_u32 s{sUS}, s{sUS}, {48*4096}")
    pre(f"""s_mov_b32 s{sK1}, 0xbdd2d3e8
    s_mov_b32 s{sK1+1}, 0xbdd2d3e8
    v_mov_b32 v128, 0xc0135761
    v_mov_b32 v129, 0xc0135761
    s_mov_b32 s{sK0}, 1.0
    s_mov_b32 s{sK0+1}, 1.0""")
    gi = 0
    for s in range(ns):
        for tb in range(4):
            T = 132 + 8*(gi & 1); O = 148 + 4*(gi % 4); gi += 1
            prs = [ACC1 + ((2*s + u//2)*4 + tb)*4 + 2*(u % 2) for u in range(4)]
            for u, a in enumerate(prs): p(f"v_pk_mul_f32 v[{T+2*u}:{T+2*u+1}], v[{a}:{a+1}], v[{a}:{a+1}]")
            for u, a in enumerate(prs): p(f"v_pk_fma_f32 v[{T+2*u}:{T+2*u+1}], v[{T+2*u}:{T+2*u+1}], s[{sK1}:{sK1+1}], v[128:129]")
            for u, a in enumerate(prs): p(f"v_pk_mul_f32 v[{T+2*u}:{T+2*u+1}], v[{T+2*u}:{T+2*u+1}], v[{a}:{a+1}]")
            for u in range(8): p(f"v_exp_f32_e64 v{T+u}, v{T+u}")
            for u in range(4): p(f"v_pk_add_f32 v[{T+2*u}:{T+2*u+1}], v[{T+2*u}:{T+2*u+1}], s[{sK0}:{sK0+1}]")
            for u in range(8): p(f"v_rcp_f32_e64 v{T+u}, v{T+u}")
            for u, a in enumerate(prs): p(f"v_pk_mul_f32 v[{T+2*u}:{T+2*u+1}], v[{T+2*u}:{T+2*u+1}], v[{a}:{a+1}]")
            for u in range(4): p(f"v_cvt_pk_bf16_f32 v{O+u}, v{T+2*u}, v{T+2*u+1}")
            p(f"buffer_store_dwordx4 v[{O}:{O+3}], v{vW2a if s == 0 else vW2b}, s[{sWS}:{sWS+3}], s{sUS} offen offset:{tb*1024} sc1", "hst")
    L = tlen(p.l)
    body = cweave(p.l, fill2, L*0.3, 8)
    pre.ext(cweave(body, fill, 40, (L - 40)/max(1, len(fill))))
    return pre
sRS, sRD, sPF = 38, 39, 40
def rl_setup():
    p = P()
    srd(p, sT, pW2, 1728*1280)
    p(f"""s_and_b32 s{sC}, s2, 7
    s_mul_i32 s{sC}, s{sC}, 14
    s_add_u32 s{sC}, s{sC}, s{sSL}
    s_cmp_lt_u32 s{sSL}, 14
    s_cselect_b32 s41, s{sC}, 200
    s_lshr_b32 s{sSPIN}, s41, 1
    s_and_b32 s{sC}, s41, 1
    s_lshl_b32 s{sPF}, s{sC}, 6
    s_add_u32 s{sPF}, s{sPF}, s{sSPIN}
    s_lshl_b32 s{sPF}, s{sPF}, {FS}
    s_add_u32 s{sPF}, s{sPF}, {FLG_P}
    s_lshl_b32 s{sC}, s{sC}, 2
    s_add_u32 s{sC}, s{sC}, s{sWV}
    s_mul_i32 s{sRS}, s{sSPIN}, 40960
    s_mul_i32 s{sRD}, s{sSPIN}, 5120
    s_mul_i32 s{sSPIN}, s{sC}, 160
    s_add_u32 s{sRS}, s{sRS}, s{sSPIN}
    s_mul_i32 s{sSPIN}, s{sC}, 276480
    s_add_u32 s{sRD}, s{sRD}, s{sSPIN}
    s_add_u32 s{sRD}, s{sRD}, {W2P}
    s_cmp_lt_u32 s41, 108
    s_cselect_b32 s{sRS}, s{sRS}, {OOB}
    s_cselect_b32 s{sRD}, s{sRD}, {OOB}
    s_cselect_b32 s{sPF}, s{sPF}, {OOB}""")
    for i in range(3):
        p(f"""v_add_u32 v64, {64*i}, v{vL}
        v_mul_u32_u24 v65, 6554, v64
        v_lshrrev_b32 v65, 16, v65
        v_mul_u32_u24 v66, {1280-160}, v65
        v_lshl_add_u32 v{44+i}, v64, 4, v66""")
        if i: p(f"v_add_u32 v{44+i}, {-1024*i}, v{44+i}")
    p(f"""v_cmp_gt_u32 vcc, 32, v{vL}
    v_mov_b32 v64, {OOB}
    v_bfe_u32 v66, v{vL}, 2, 4
    v_cndmask_b32 v46, v64, v46, vcc
    v_mul_u32_u24 v66, 160, v66
    v_and_b32 v67, 3, v{vL}
    s_add_u32 s{sC}, s{sMX}, {3*32768}
    v_lshl_add_u32 v66, v67, 3, v66
    v_add_u32 v47, s{sC}, v66""")
    return p
def rl_dma():
    g = []
    for h in range(2):
        g.append(I(f"s_add_u32 m0, s{sMX}, {3*32768 + 16384*h}"))
        for i in range(3): g.append(I(f"buffer_load_dwordx4 v{44+i}, s[{sT}:{sT+3}], s{sRS} offen offset:{i*1024} lds", "rld"))
        if h == 0: g.append(I(f"s_add_u32 s{sRS}, s{sRS}, 20480"))
    return g
def rl_xfer():
    g = [[I("@wvm rld")]]
    for db in range(5):
        for h in range(2): g[0].append(I(f"ds_read_b64_tr_b16 a[{4*db+2*h}:{4*db+2*h+1}], v47 offset:{32*db + 16384*h}", f"rl{db}"))
    for db in range(5):
        g.append([I(f"@wlg rl{db}"), I(f"buffer_store_dwordx4 a[{4*db}:{4*db+3}], v{vW2a if db < 4 else vW2b}, s[{sWS}:{sWS+3}], s{sRD} offen offset:{(db & 3)*1024} sc1", "pst")])
    return g
def c_setup():
    p = P()
    srd(p, sX, pU, 2048*1280); srd(p, sT, pGw, 1280)
    p(f"""s_mov_b32 s{sOX}, 0
    s_lshl_b32 s{sMX}, s{sWV}, 15
    s_add_u32 s{sMX}, s{sMX}, {RING}
    s_lshl_b32 s{sC}, s{sRB}, 2
    s_add_u32 s{sC}, s{sC}, s{sWV}
    s_mul_i32 s{sC}, s{sC}, {32*1280}
    v_lshrrev_b32 v64, 3, v{vL}
    v_and_b32 v65, 7, v{vL}
    v_xor_b32 v66, v64, v65
    v_mul_u32_u24 v67, 1280, v64
    v_lshl_add_u32 v67, v66, 4, v67
    v_add_u32 v{vDX}, s{sC}, v67""")
    for i in range(1, 4): p(f"v_add_u32 v{vDX+i}, {i*9216}, v{vDX}")
    p(f"""s_and_b32 s{sC}, s{sWV}, 1
    s_lshl_b32 s{sC}, s{sC}, 10
    s_add_u32 m0, s{sC}, {GW}
    v_lshlrev_b32 v65, 4, v{vL}""")
    p(f"buffer_load_dwordx4 v65, s[{sT}:{sT+3}], s{sC} offen lds", "gw")
    return p
def dma_c(cc):
    g = [I(f"s_add_u32 m0, s{sMX}, {(cc & 7)*4096}")]
    for i in range(4): g.append(I(f"buffer_load_dwordx4 v{vDX+i}, s[{sX}:{sX+3}], s{sOX} offen offset:{i*1024} lds", f"cu{cc}"))
    g.append(I(f"s_add_u32 s{sOX}, s{sOX}, 128"))
    return g
def cgate():
    p = P()
    p(f"""v_and_b32 v64, 7, v{vN}
    v_xor_b32 v64, v64, v{vG}
    v_lshl_add_u32 v65, v{vN}, 7, s{sMX}
    v_lshl_add_u32 v{vXA}, v64, 4, v65
    v_xor_b32 v{vXA+1}, 64, v{vXA}
    v_lshlrev_b32 v{vXA+2}, 4, v{vG}""")
    def rd(cc):
        R = 64 + 24*(cc & 1)
        p.wvm(f"cu{cc}")
        for ks in range(2):
            p(f"ds_read_b128 v[{R+12*ks}:{R+12*ks+3}], v{vXA+2} offset:{GW + cc*128 + ks*64}", f"g{cc}")
            for tb in range(2): p(f"ds_read_b128 v[{R+12*ks+4+4*tb}:{R+12*ks+7+4*tb}], v{vXA+ks} offset:{(cc & 7)*4096 + tb*2048}", f"g{cc}")
    rd(0)
    for cc in range(10):
        if cc < 9: rd(cc + 1)
        p.wlg(f"g{cc}")
        if cc < 2: p.ext(dma_c(cc + 8))
        R = 64 + 24*(cc & 1)
        for ks in range(2):
            for tb in range(2):
                a = GACC + 4*tb + 8*ks
                p(f"v_mfma_f32_16x16x32_bf16 v[{a}:{a+3}], v[{R+12*ks}:{R+12*ks+3}], v[{R+12*ks+4+4*tb}:{R+12*ks+7+4*tb}], " + ("0" if cc == 0 else f"v[{a}:{a+3}]"))
    p(f"""s_lshl_b32 s{sT1}, s{sRB}, 2
    s_add_u32 s{sT1}, s{sT1}, s{sWV}
    s_lshl_b32 s{sT1}, s{sT1}, 7
    s_add_u32 s{sT1}, s{sT1}, {GBUF}
    v_and_b32 v64, 31, v{vL}
    v_cmp_eq_u32 vcc, 0, v{vG}
    v_lshlrev_b32 v64, 2, v64
    v_add_f32 v{GACC}, v{GACC}, v{GACC+8}
    v_add_f32 v{GACC+4}, v{GACC+4}, v{GACC+12}
    v_cndmask_b32 v{GACC}, v{GACC+4}, v{GACC}, vcc
    v_cmp_gt_u32 vcc, 32, v{vL}
    v_mov_b32 v65, {OOB}
    v_cvt_pk_bf16_f32 v{GACC}, v{GACC}, v{GACC}
    v_cndmask_b32 v64, v65, v64, vcc
    v_lshlrev_b32 v{GACC}, 16, v{GACC}
    v_mul_f32 v{GACC}, 0xbfb8aa3b, v{GACC}
    v_exp_f32 v{GACC}, v{GACC}
    v_add_f32 v{GACC}, 1.0, v{GACC}
    v_rcp_f32 v{GACC}, v{GACC}
    v_cvt_pk_bf16_f32 v{GACC}, v{GACC}, v{GACC}
    v_lshlrev_b32 v{GACC}, 16, v{GACC}""")
    p(f"buffer_store_dword v{GACC}, v64, s[{sWS}:{sWS+3}], s{sT1} offen sc1", "hst")
    return p
```

```python
from gen2 import *
import sys
from align import align
vPOLL = 14
def up_addr():
    p = P()
    p(f"""s_lshr_b32 s{sC}, s{sPAIR}, 5
    s_lshl_b32 s{sC}, s{sC}, {FS+4}
    s_add_u32 s{sC}, s{sC}, {FLG_U}
    v_lshl_add_u32 v13, v{vN}, {FS}, s{sC}""")
    poll_issue(p, vPOLL, 13, "pu")
    q = P()
    q(f"""s_and_b32 s{sC}, s2, 1
    s_lshl_b32 s{sC}, s{sC}, {FS+6}
    s_add_u32 s{sC}, s{sC}, {FLG_P}
    v_min_u32 v12, 53, v{vL}
    v_lshl_add_u32 v12, v12, {FS}, s{sC}""")
    poll_issue(q, 226, 12, "pp")
    return [p.l, q.l]
def p_check():
    p = P(); poll_check(p, 226, 12, "pp"); return [p.l]
def u_issue(role):
    p = P()
    poll_check(p, vPOLL, 13, "pu")
    p(f"s_lshr_b32 s{sC}, s{sPAIR}, 1\ns_lshl_b32 s{sC}, s{sC}, 14\ns_add_u32 s{sT1}, s{sC}, {UT}")
    if role == "A":
        p(f"""s_and_b32 s{sC}, s{sPAIR}, 1
        s_lshl_b32 s{sC}, s{sC}, 5
        s_add_u32 s{sT1}, s{sT1}, s{sC}
        v_lshrrev_b32 v13, 1, v0
        v_and_b32 v14, 1, v0
        v_lshlrev_b32 v13, 6, v13
        v_lshl_add_u32 v13, v14, 4, v13
        s_add_u32 s{sT2}, s{sT1}, 8192""")
        p(f"buffer_load_dwordx4 v[36:39], v13, s[{sWS}:{sWS+3}], s{sT1} offen sc1\nbuffer_load_dwordx4 v[40:43], v13, s[{sWS}:{sWS+3}], s{sT2} offen sc1", "ud")
    else:
        p(f"v_lshlrev_b32 v13, 4, v0")
        for i in range(4):
            p(f"buffer_load_dwordx4 v[{36+4*i}:{39+4*i}], v13, s[{sWS}:{sWS+3}], s{sT1} offen sc1", "ud")
            if i < 3: p(f"s_add_u32 s{sT1}, s{sT1}, 4096")
    return singles(p.l[1:])[1:] and [p.l[:1] + singles(p.l[1:])[0]] + singles(p.l[1:])[1:]
def u_write(role):
    p = P()
    sh, n, istr = (1, 2, 2048) if role == "A" else (2, 4, 1024)
    p(f"""v_bfe_u32 v13, v0, 5, 2
    v_and_b32 v14, 31, v0
    v_mul_u32_u24 v13, {USTR}, v13
    v_mov_b32 v16, 0
    v_mov_b32 v17, 0
    v_mov_b32 v18, 0
    v_mov_b32 v19, 0
    v_lshl_add_u32 v13, v14, 4, v13
    v_and_b32 v14, {n-1}, v0
    v_mul_u32_u24 v14, {USTR}, v14""")
    p(f"ds_write_b128 v13, v[16:19] offset:{UB}", "uw")
    p(f"v_lshrrev_b32 v13, {sh}, v0\nv_lshl_add_u32 v13, v13, 4, v14")
    p.wvm("ud")
    for i in range(n): p(f"ds_write_b128 v13, v[{36+4*i}:{39+4*i}] offset:{UB+512+i*istr}", "uw")
    return p
CACC = 64; CT = (96, 160); CU = (128, 192); vTB = (24, 28); vT0, vU0 = 32, 33
def conv(rnd, fill, hooks):
    p = P()
    p(f"""s_lshr_b32 s{sC}, s{sWV}, 1
    s_mul_i32 s{sT1}, s{sC}, 8320
    s_add_u32 s{sC}, s{sC}, {2*rnd}
    s_mul_i32 s{sT2}, s{sC}, {USTR}
    s_and_b32 s{sC}, s{sWV}, 1
    s_lshl_b32 s{sC}, s{sC}, 6
    s_sub_u32 s{sT1}, s{sT1}, s{sC}
    s_sub_u32 s{sT2}, s{sT2}, s{sC}
    s_add_u32 s{sT1}, s{sT1}, {RB + 4062}
    s_add_u32 s{sT2}, s{sT2}, {UB + 96}
    v_and_b32 v13, 1, v{vN}
    v_xor_b32 v13, 1, v13
    v_mul_u32_u24 v13, 4158, v13
    v_lshl_add_u32 v13, v{vG}, 4, v13
    v_lshlrev_b32 v14, 1, v{vN}
    v_sub_u32 v13, v13, v14
    v_add_u32 v{vT0}, s{sT1}, v13
    v_lshl_add_u32 v13, v{vN}, 5, s{sT2}
    v_lshl_add_u32 v{vU0}, v{vG}, 4, v13""")
    def tadr(k): return [[I(f"v_add_u32 v{vTB[k&1]+u}, {-(1024*u + 512 + 128*k)}, v{vT0}")] for u in range(4)]
    def trd(k):
        g = []
        for a in range(8):
            o = 0 if a & 1 else 128
            r = CT[k&1] + 4*a
            g.append([I(f"ds_read2_b32 v[{r}:{r+1}], v{vTB[k&1]+a//2} offset0:{o} offset1:{o+1}", f"t{k}_{a}")])
            g.append([I(f"ds_read2_b32 v[{r+2}:{r+3}], v{vTB[k&1]+a//2} offset0:{o+2} offset1:{o+3}", f"t{k}_{a}")])
        return g
    def urd(k, ms): return [[I(f"ds_read_b128 v[{CU[k&1]+4*m}:{CU[k&1]+4*m+3}], v{vU0} offset:{512*m+384-128*k}", f"u{k}_{m}")] for m in ms]
    for g in tadr(0): p.ext(g)
    p("s_waitcnt lgkmcnt(0)\ns_barrier")
    for g in urd(0, [0]) + trd(0) + urd(0, range(1, 8)): p.ext(g)
    nf = len(fill); fi = 0
    for k in range(4):
        if k in hooks: p.ext(hooks[k])
        m_ = []
        for m in range(8):
            for a in range(8 - m):
                pre = []
                if m == 0: pre.append(I(f"@wlg t{k}_{a}"))
                if a == 0: pre.append(I(f"@wlg u{k}_{m}"))
                j = CACC + 4*(a + m)
                c = "0" if (k == 0 and m == 0) else f"v[{j}:{j+3}]"
                m_.append(pre + [I(f"v_mfma_f32_16x16x32_bf16 v[{j}:{j+3}], v[{CT[k&1]+4*a}:{CT[k&1]+4*a+3}], v[{CU[k&1]+4*m}:{CU[k&1]+4*m+3}], {c}")])
        rd = []
        if k < 3:
            ta = tadr(k+1)
            rd = [ta[0] + ta[1] + ta[2] + ta[3]] + urd(k+1, [0]) + trd(k+1) + urd(k+1, range(1, 8))
        f = fill[fi: (nf*(k+1))//4]; fi = (nf*(k+1))//4
        start = 8 if k == 0 else 2
        out = []; ri = 0; gi = 0
        for i, mm in enumerate(m_):
            out += mm
            if i >= start and ri < len(rd): out += rd[ri]; ri += 1
            while gi < len(f) and gi * 36 <= i * len(f): out += f[gi]; gi += 1
        assert ri == len(rd)
        while gi < len(f): out += f[gi]; gi += 1
        p.ext(out)
    return p
def aout(rnd, pre_bar=None):
    p = P()
    p(f"""s_lshr_b32 s{sC}, s{sWV}, 1
    s_mul_i32 s{sT1}, s{sC}, {CS}
    s_and_b32 s{sC}, s{sWV}, 1
    s_lshl_b32 s{sC}, s{sC}, 13
    s_add_u32 s{sT1}, s{sT1}, s{sC}
    s_add_u32 s{sT1}, s{sT1}, {PART}
    v_lshrrev_b32 v24, 1, v{vG}
    v_lshl_add_u32 v24, v24, 3, v{vN}
    v_and_b32 v24, 15, v24
    v_lshl_add_u32 v25, v{vG}, 8, s{sT1}
    v_lshl_add_u32 v24, v24, 4, v25""")
    for j in range(8): p(f"ds_write_b128 v24, v[{CACC+4*j}:{CACC+4*j+3}] offset:{1024*j}", "pw")
    p(f"""s_lshl_b32 s{sC}, s{sWV}, 10
    s_add_u32 s{sC}, s{sC}, {PART}
    v_and_b32 v25, 1, v{vL}
    v_bfe_u32 v26, v{vL}, 1, 1
    v_lshrrev_b32 v27, 2, v{vL}
    v_lshl_add_u32 v27, v25, 3, v27
    v_and_b32 v27, 15, v27
    v_mul_u32_u24 v26, {CS}, v26
    v_lshl_add_u32 v26, v25, 9, v26
    v_lshl_add_u32 v26, v27, 4, v26
    v_add_u32 v26, s{sC}, v26
    v_lshrrev_b32 v27, 2, v0
    v_mul_u32_u24 v27, 20480, v27
    v_and_b32 v25, 3, v0
    v_lshl_add_u32 v27, v25, 4, v27
    s_add_u32 s{sC}, s{sPAIR}, {rnd}
    s_lshl_b32 s{sT1}, s{sC}, 6
    s_add_u32 s{sT1}, s{sT1}, {APR}
    s_add_u32 s{sT2}, s{sT1}, {64*20480}
    s_lshl_b32 s{sUS}, s{sC}, {FS}
    s_add_u32 s{sUS}, s{sUS}, {FLG_A}""")
    if pre_bar: p.ext(pre_bar)
    p("s_waitcnt lgkmcnt(0)\ns_barrier")
    for i in range(2):
        for h in range(2):
            for u in range(2): p(f"ds_read_b128 v[{96+16*i+8*h+4*u}:{99+16*i+8*h+4*u}], v26 offset:{4096*i+8192*h+256*u}", f"pr{i}")
    for i in range(2):
        p.wlg(f"pr{i}")
        b = 96 + 16*i
        for u in range(4): p(f"v_pk_add_f32 v[{b+2*u}:{b+2*u+1}], v[{b+2*u}:{b+2*u+1}], v[{b+8+2*u}:{b+9+2*u}]")
        for u in range(4): p(f"v_cvt_pk_bf16_f32 v{128+4*i+u}, v{b+2*u}, v{b+2*u+1}")
        p(f"buffer_store_dwordx4 v[{128+4*i}:{131+4*i}], v27, s[{sWS}:{sWS+3}], s{sT1 if i == 0 else sT2} offen sc1", "ast")
    return p
def hflag_hook(role):
    p = P()
    p(f"s_lshl_b32 s{sT1}, s{sRB}, {FS+4}\ns_lshl_b32 s{sC}, s{sCT}, {FS}\ns_add_u32 s{sT1}, s{sT1}, s{sC}\ns_add_u32 s{sT1}, s{sT1}, {FLG_H + (0 if role == 'A' else 12 << FS)}")
    if role == "C": p(f"s_lshl_b32 s{sT1}, s{sRB}, {FS+4}\ns_add_u32 s{sT1}, s{sT1}, {FLG_H + (15 << FS)}")
    p.wvm("hst"); p("s_barrier"); flag_store(p, sT1)
    return p
def tail_fill():
    q = P()
    q(f"s_mul_i32 s{sSPIN}, s{sC2}, 160\nv_lshl_add_u32 v12, v{vG}, 3, s{sSPIN}")
    g0 = [q.l]
    for db in range(5): g0.append([I(f"global_load_dwordx2 v[{46+2*db}:{47+2*db}], v12, s[{pB2}:{pB2+1}] offset:{32*db}", "b2")])
    q = P()
    q(f"""s_lshr_b32 s{sSPIN}, s{sRT}, 1
    s_lshl_b32 s{sSPIN}, s{sSPIN}, {FS+4}
    s_add_u32 s{sSPIN}, s{sSPIN}, {FLG_H}
    v_lshl_add_u32 v13, v{vN}, {FS}, s{sSPIN}""")
    poll_issue(q, vPOLL, 13, "ph")
    return g0, [q.l]
G2ACC = 64; HR = 144
def gemm2():
    p = P(); DH = OPT["DH"]
    def hl(j): return [[I(f"buffer_load_dwordx4 v[{HR+16*(j%DH)+4*s}:{HR+16*(j%DH)+4*s+3}], v{vH+s}, s[{sWS}:{sWS+3}], s{sHO+j} offen sc1", f"h{j}")] for s in range(4)]
    poll_check(p, vPOLL, 13, "ph")
    for j in range(DH - 1):
        for g in hl(j): p.ext(g)
    ts(p, 10)
    p.wvm("b2"); unpack(p, 36, 46, 5)
    srd(p, sT, pOut, 2048*1280)
    AL = HR + 16*(14 % DH)
    for j in range(14):
        p.wvm(f"w2_{j}"); p.wvm(f"h{j}")
        m = []
        for s in range(4):
            for db in range(5):
                a = G2ACC + 20*s + 4*db
                c = f"v[{a}:{a+3}]" if j else (f"v[{36+4*db}:{39+4*db}]" if s == 0 else "0")
                m.append(I(f"v_mfma_f32_16x16x32_bf16 v[{a}:{a+3}], {w2reg(5*j+db)}, v[{HR+16*(j%DH)+4*s}:{HR+16*(j%DH)+4*s+3}], {c}"))
        f = hl(j + DH - 1) if j + DH - 1 < 14 else []
        body = weave(m, f, 1, 5)
        ex = []
        if j == 2:
            q = P(); q.wvm("ast"); q("s_barrier"); flag_store(q, sUS); ex = [q.l]
        if j == 14 - DH:
            q = P()
            q(f"""s_mul_i32 s{sC}, s{sC2}, {40 << FS}
            s_add_u32 s{sC}, s{sC}, {FLG_A}
            v_min_u32 v13, 39, v{vL}
            v_lshl_add_u32 v13, v13, {FS}, s{sC}""")
            poll_issue(q, vPOLL, 13, "pa"); ex = [q.l]
        if j == 12:
            q = P()
            poll_check(q, vPOLL, 13, "pa")
            q(f"""s_lshl_b32 s{sC}, s{sRT}, 2
            s_add_u32 s{sC}, s{sC}, s{sWV}
            s_mul_i32 s{sT1}, s{sC}, 20480
            s_lshl_b32 s{sT2}, s{sC}, 6
            s_mul_i32 s{sC}, s{sC2}, 2560
            s_add_u32 s{sT1}, s{sT1}, s{sC}
            s_add_u32 s{sT1}, s{sT1}, {APR}
            s_add_u32 s{sT2}, s{sT2}, {GBUF}
            v_cmp_gt_u32 vcc, 32, v{vL}
            v_mov_b32 v12, {OOB}
            v_lshlrev_b32 v13, 2, v{vN}
            v_cndmask_b32 v12, v12, v{vW2a}, vcc""")
            q(f"""buffer_load_dwordx4 v[{AL}:{AL+3}], v{vW2a}, s[{sWS}:{sWS+3}], s{sT1} offen sc1
            buffer_load_dwordx4 v[{AL+4}:{AL+7}], v{vW2a}, s[{sWS}:{sWS+3}], s{sT1} offen offset:1024 sc1
            buffer_load_dwordx4 v[{AL+8}:{AL+11}], v12, s[{sWS}:{sWS+3}], s{sT1} offen offset:2048 sc1
            buffer_load_dword v{vGv}, v13, s[{sWS}:{sWS+3}], s{sT2} offen sc1""", "ad")
            ex = [q.l]
        if j == 13:
            q = P()
            for s in range(1, 4):
                q(f"s_xor_b32 s{sC}, s{sWV}, {s}\ns_mul_i32 s{sC}, s{sC}, 15360\ns_add_u32 s{sC}, s{sC}, {RED + (s-1)*5120}\nv_add_u32 v{24+s}, s{sC}, v{vW2a}")
            q(f"""s_mul_i32 s{sC}, s{sWV}, 15360
            s_add_u32 s{sC}, s{sC}, {RED}
            v_add_u32 v24, s{sC}, v{vW2a}
            s_mul_i32 s{sC}, s{sWV}, 3072
            s_add_u32 s{sC}, s{sC}, {AST}
            v_add_u32 v28, s{sC}, v{vW2a}
            v_lshl_add_u32 v29, v{vL}, 3, s{sC}
            v_mul_u32_u24 v30, 176, v{vN}
            v_lshl_add_u32 v30, v{vG}, 3, v30
            v_add_u32 v30, s{sC}, v30""")
            for i in range(3):
                q(f"""v_add_u32 v12, {64*i}, v{vL}
                v_mul_u32_u24 v13, 6554, v12
                v_lshrrev_b32 v13, 16, v13
                v_mul_u32_u24 v14, 10, v13
                v_sub_u32 v12, v12, v14
                v_mul_u32_u24 v14, 176, v13
                v_lshl_add_u32 v14, v12, 4, v14
                v_add_u32 v{16+i}, s{sC}, v14
                v_mul_u32_u24 v14, 1280, v13
                v_lshl_add_u32 v{20+i}, v12, 4, v14""")
            q(f"""v_cmp_gt_u32 vcc, 32, v{vL}
            v_mov_b32 v12, {OOB}
            s_lshl_b32 s{sC}, s{sRT}, 2
            v_cndmask_b32 v22, v12, v22, vcc
            s_add_u32 s{sC}, s{sC}, s{sWV}
            s_mul_i32 s{sT1}, s{sC}, 20480
            s_mul_i32 s{sC}, s{sC2}, 160
            s_add_u32 s{sT1}, s{sT1}, s{sC}""")
            body = weave(body, groups(q), 0, 0.4); ex = []
        body = weave(body, ex, 12 if j != 12 else 4, 1)
        p.ext(body)
    ts(p, 11)
    for s in range(1, 4):
        for db in range(5):
            a = G2ACC + 20*s + 4*db
            p(f"ds_write_b128 v{24+s}, v[{a}:{a+3}] offset:{db*1024}", "rw")
    p.wvm("ad")
    for i in range(3): p(f"ds_write_b128 v28, v[{AL+4*i}:{AL+4*i+3}] offset:{i*1024}", "rw")
    p("s_waitcnt lgkmcnt(0)\ns_barrier")
    ts(p, 12)
    for db in range(5):
        p(f"ds_read_b64_tr_b16 v[{36+2*db}:{37+2*db}], v29 offset:{db*512}", f"r{db}")
        for s in range(1, 4):
            a = G2ACC + 20*s + 4*db
            p(f"ds_read_b128 v[{a}:{a+3}], v24 offset:{(s-1)*5120+db*1024}", f"r{db}")
    for db in range(5):
        p.wlg(f"r{db}")
        a = G2ACC + 4*db
        for s in range(1, 4):
            for u in (0, 2): p(f"v_pk_add_f32 v[{a+u}:{a+u+1}], v[{a+u}:{a+u+1}], v[{a+20*s+u}:{a+20*s+u+1}]")
        unpack(p, 48, 36 + 2*db, 1)
        for u in (0, 2): p(f"v_pk_add_f32 v[{48+u}:{49+u}], v[{48+u}:{49+u}], v[{a+u}:{a+u+1}] neg_lo:[0,1] neg_hi:[0,1]")
        for u in (0, 2): p(f"v_pk_fma_f32 v[{a+u}:{a+u+1}], v[{48+u}:{49+u}], v[{vGv}:{vGv+1}], v[{a+u}:{a+u+1}] op_sel_hi:[1,0,1]")
        p(f"v_cvt_pk_bf16_f32 v{52+2*(db&1)}, v{a}, v{a+1}\nv_cvt_pk_bf16_f32 v{53+2*(db&1)}, v{a+2}, v{a+3}")
        p(f"ds_write_b64 v30, v[{52+2*(db&1)}:{53+2*(db&1)}] offset:{32*db}", "ow")
    for i in range(3): p(f"ds_read_b128 v[{96+4*i}:{99+4*i}], v{16+i}", f"o{i}")
    for i in range(3):
        p.wlg(f"o{i}")
        p(f"buffer_store_dwordx4 v[{96+4*i}:{99+4*i}], v{20+i}, s[{sT}:{sT+3}], s{sT1} offen " + OPT.get("ost", "").replace("_", " "), "out")
    finish(p)
    return p
def finish(p):
    if OPT["ts"]:
        p("s_waitcnt vmcnt(0)"); ts(p, 13)
        l = lab("tse")
        p(f"""s_cmp_lg_u32 s{sWV}, 0
        s_cbranch_scc1 {l}
        s_add_u32 s{pWs}, s{pWs}, {TS_OFF}
        s_addc_u32 s{pWs+1}, s{pWs+1}, 0
        s_lshl_b32 s{sC}, s2, 7
        v_lshl_add_u32 v12, v{vL}, 3, s{sC}
        s_mov_b64 exec, 0xffff
        global_store_dwordx2 v12, v[{vTS}:{vTS+1}], s[{pWs}:{pWs+1}]
        {l}:""")
    p("s_endpgm")
def dbg_dump_R(p):
    p(f"s_waitcnt vmcnt(0) lgkmcnt(0)\ns_barrier\ns_lshl_b32 s{sC}, s2, 15\ns_add_u32 s{sC}, s{sC}, {DBG}\nv_lshlrev_b32 v12, 4, v0")
    for i in range(8):
        p(f"ds_read_b128 v[64:67], v12 offset:{i*4096}\ns_waitcnt lgkmcnt(0)\nbuffer_store_dwordx4 v[64:67], v12, s[{sWS}:{sWS+3}], s{sC} offen\ns_add_u32 s{sC}, s{sC}, 4096\ns_waitcnt vmcnt(0)")
    p("s_endpgm")

def role_head(role):
    p = P()
    if role != "A": p(f"L_{role}:")
    prefetch_code(p, role)
    x, sl, pp, q = sA, sB, sOX, sOW
    if role == "A":
        p(f"""s_mul_i32 s{sCT}, s{q}, 6
        s_lshr_b32 s{sC}, s{sl}, 2
        s_add_u32 s{sCT}, s{sCT}, s{sC}
        s_and_b32 s{sC}, s{sl}, 3
        s_lshl_b32 s{sRB}, s{pp}, 2
        s_add_u32 s{sRB}, s{sRB}, s{sC}
        s_mul_i32 s{sPAIR}, s{x}, 24
        s_add_u32 s{sPAIR}, s{sPAIR}, s{sl}
        s_mul_i32 s{sC}, s{sRB}, 3
        s_add_u32 s{sC}, s{sC}, s{sCT}""")
        mod10(p, sCH, sC, sSPIN)
    elif role == "B":
        p(f"""s_mul_i32 s{sC}, s{q}, 6
        s_add_u32 s{sC}, s{sC}, s{sl}
        s_sub_u32 s{sC}, s{sC}, 24
        s_lshr_b32 s{sCT}, s{sC}, 2
        s_and_b32 s{sC}, s{sC}, 3
        s_lshl_b32 s{sRB}, s{pp}, 2
        s_add_u32 s{sRB}, s{sRB}, s{sC}
        s_mul_i32 s{sPAIR}, s{x}, 6
        s_add_u32 s{sPAIR}, s{sPAIR}, s{sl}
        s_lshl_b32 s{sPAIR}, s{sPAIR}, 1
        s_add_u32 s{sPAIR}, s{sPAIR}, {192-48}
        s_add_u32 s{sC}, s{sRB}, s{sCT}
        s_mul_i32 s{sC}, s{sC}, 3
        s_add_u32 s{sC}, s{sC}, 6""")
        mod10(p, sCH, sC, sSPIN)
    else:
        p(f"""s_lshl_b32 s{sCT}, s{x}, 1
        s_add_u32 s{sCT}, s{sCT}, s{sl}
        s_sub_u32 s{sCT}, s{sCT}, 30
        s_lshl_b32 s{sPAIR}, s{sCT}, 1
        s_mov_b32 s{sRB}, s{sCT}
        s_add_u32 s{sPAIR}, s{sPAIR}, 288""")
    params_issue(p, role)
    if OPT.get('stop') == 0: p('s_waitcnt lgkmcnt(0)'); finish(p)
    pre = post = None
    kdt = OPT.get("kdt", 90)
    if role == "C":
        p.ext(c_setup())
        p(f"s_mov_b32 s{sSL}, s{sB}")
        p.ext(dma_c(0))
        nonce_issue(p)
        fill = sum((singles(dma_c(cc)) for cc in range(1, 8)), [])
        pre = P(); pre.wvm("gw"); kdt = OPT.get("kdtC", 48)
        p.ext(common_v())
    else:
        nw = 4 if role == "A" else 2
        p.ext(g1_setup(role))
        p(f"s_mov_b32 s{sKA}, s{sCH}\ns_mov_b32 s{sSL}, s{sB}")
        p.ext(dma_x(0))
        if role == "A": p.ext(rl_setup()); p.ext(rl_dma()); p.ext(ut_setup())
        nonce_issue(p)
        bi = g1_bias_issue(role).l; nb = len(bi) - nw
        p.ext(bi[:nb])
        p.ext(common_v())
        fill = singles(dma_w(0, nw)) + [bi[nb:]] + sum((singles(g) for g in [dma_x(1), dma_w(1, nw), dma_x(2), dma_w(2, nw)]), [])
        kdt = OPT.get("kdtB", 70)
        if role == "A":
            r = rl_xfer(); u = ut_xfer(); k0 = OPT.get("k0", 5)
            fill = fill[:k0] + [r[0][:1] + u[0], r[0][1:]] + u[1:] + r[1:] + fill[k0:]
            kdt = OPT.get("kdtA", 42)
            pre = P(); nonce_check(pre); pre.wvm("pst")
            post = P(); flag_store(post, sT2); flag_store(post, sPF)
    for g in g2_offsets(): p.ext(g)
    p("s_waitcnt lgkmcnt(0)")
    if role == "A":
        p(f"""s_lshl_b32 s{sGC}, s{sKA}, {FS+4}
        s_lshl_b32 s{sUS}, s{sKA}, 18
        s_lshl_b32 s{sC}, s{sRB}, 10
        s_add_u32 s{sUS}, s{sUS}, s{sC}
        s_add_u32 s{sUS}, s{sUS}, {UT}
        s_lshl_b32 s{sC}, s{sRB}, {FS}
        s_add_u32 s{sT2}, s{sGC}, s{sC}
        s_add_u32 s{sT2}, s{sT2}, {FLG_U}
        s_cmp_lt_u32 s{sCT}, 10
        s_cselect_b32 s{sUS}, s{sUS}, {OOB}
        s_cselect_b32 s{sT2}, s{sT2}, {OOB}""")
    ts(p, 1)
    if OPT.get("x2"):
        l = lab("lp")
        for g in fill: p.ext(g)
        p("s_waitcnt vmcnt(0) lgkmcnt(0)\ns_mov_b32 s41, 0"); ts(p, 2); p(f"{l}:")
        p.ext(kgen(vP0, 0, 54, [], 100, kdt, None, None))
        p(f"s_waitcnt lgkmcnt(0)\ns_barrier\ns_memtime s[{sA}:{sA+1}]\ns_add_u32 s41, s41, 1\ns_add_u32 m0, s41, 2\ns_waitcnt lgkmcnt(0)\nv_writelane_b32 v{vTS}, s{sA}, m0\nv_writelane_b32 v{vTS+1}, s{sA+1}, m0\ns_cmp_lt_u32 s41, 3\ns_cbranch_scc1 {l}")
        finish(p)
    p.ext(kgen(vP0, 0, 54, fill, 100, kdt, pre, post))
    if OPT["dbg"] == "R": dbg_dump_R(p)
    if role != "A": nonce_check(p)
    ts(p, 2)
    if OPT.get('stop') == 2: finish(p)
    return p
def build():
    SLOW.clear()
    out = []
    st0 = St(); e = entry(); out += resolve(e.l, st0)
    b2g, hpoll = None, None
    for role in "ABC":
        st = st0.copy()
        p = role_head(role)
        W = w2loads(0, 70)
        up = up_addr()
        if role == "A":
            n1, n2 = OPT.get("n1", 26), OPT.get("n2", 16)
            sched = {8: up[:1], 9: up[1:], 13: u_issue(role) + p_check() + W[:2]}
            for k in range(6): sched[14 + k] = W[2 + (n1-2)*k//6: 2 + (n1-2)*(k+1)//6]
            p.ext(cweave(g1_addr(role).l, singles(dma_x(3)), 0, 50)); p.ext(gemm1("A", sched)); ts(p, 3)
            if OPT.get('stop') == 3: finish(p)
            p("s_nop 7")
            p.ext(gelu(role, W[n1:n1+n2], groups(u_write(role)))); ts(p, 4)
            W = W[n1+n2:]
        elif role == "B":
            p.ext(cweave(g1_addr(role).l, singles(dma_x(3)), 0, 40)); p.ext(gemm1("B", {16: up})); ts(p, 3)
            if OPT.get('stop') == 3: finish(p)
            p("s_nop 7")
            for g in u_issue(role): p.ext(g)
            p.ext(gelu(role, p_check() + W[:6])); ts(p, 4); W = W[6:]
            p.ext(u_write(role))
        else:
            for g in up: p.ext(g)
            p.ext(cgate()); ts(p, 3)
            if OPT.get('stop') == 3: finish(p)
            for g in u_issue(role) + p_check(): p.ext(g)
            p("s_barrier"); ts(p, 4)
            p.ext(u_write(role))
        if OPT.get('stop') == 4: finish(p)
        hooks = {2: hflag_hook(role)}
        if role != "A":
            n3, n4 = OPT.get("n3", 28), OPT.get("n4", 18)
            p.ext(conv(0, W[:n3], hooks)); ts(p, 5); p.ext(aout(0)); ts(p, 6)
            pre = P(); pre.wvm("ast"); post = P(); flag_store(post, sUS)
            p.ext(kgen(vP1, 1, 55, W[n3:n3+n4], 60, 80, pre, post, 1)); ts(p, 7)
            hooks = {}; W = W[n3+n4:]
        b2g, hpoll = tail_fill()
        p.ext(conv(0 if role == "A" else 1, b2g + W + hpoll, hooks)); ts(p, 8)
        p.ext(aout(0 if role == "A" else 1)); ts(p, 9)
        if OPT.get('stop') == 9: finish(p)
        p.ext(gemm2())
        out += resolve(p.l, st)
        out += P()("".join(SLOW) + f"L_{role}_end:").l
        SLOW.clear()
    ref = open("cdna_kernels/" + NAME + ".s.ref").read().split("\n")
    hdr = []
    for l in ref:
        if l.startswith("; @launch"): break
        hdr.append(l)
    K = NAME + "_kernel"
    hdr += [f"; @launch grid=(256,1,1) block=(256,1,1) lds={LDS}", '.amdgcn_target "amdgcn-amd-amdhsa--gfx950"', ".text", f".globl {K}", ".p2align 8", f".type {K},@function", f"{K}:"]
    wrap = lambda o: "\n".join(hdr) + "\n" + text(o) + tail
    tail = f"""L_end:
s_endpgm
.section .rodata,"a"
.p2align 6
.amdhsa_kernel {K}
  .amdhsa_next_free_vgpr 512
  .amdhsa_next_free_sgpr 102
  .amdhsa_accum_offset 256
  .amdhsa_group_segment_fixed_size 0
  .amdhsa_kernarg_size 144
  .amdhsa_user_sgpr_count 2
  .amdhsa_user_sgpr_kernarg_segment_ptr 1
  .amdhsa_system_sgpr_workgroup_id_x 1
.end_amdhsa_kernel
"""
    if OPT.get("al", 6): out = align(out, wrap, 3, OPT.get("al", 6))
    return wrap(out)
if __name__ == "__main__":
    fn = sys.argv[1]
    for a in sys.argv[2:]:
        k, v = a.split("=")
        OPT[k] = int(v) if v.lstrip("-").isdigit() else v
    open(fn, "w").write(build())
```

```python
from fw import *
NAME = "gated_mix__ssm_conv_s4__dense_activation_gelu__prompt"
OPT = dict(ts=False, dbg="", DH=5)
HP, W2P, UT, APR, GBUF, FLG = 0, 0x700000, 0xA00000, 0xD00000, 0x1000000, 0x1010000
FLG_H, FLG_U, FLG_P, FLG_A = FLG, FLG + 0x8000, FLG + 0x10000, FLG + 0x20000
class _FS:
    def __index__(s): return OPT.get('FS', 7)
    def __format__(s, f): return str(OPT.get('FS', 7))
    def __add__(s, o): return OPT.get('FS', 7) + o
    def __rlshift__(s, o): return o << OPT.get('FS', 7)
FS = _FS()
DBG = 0x1800000
WSREC = 0x2000000
OOB = 0x7ff00000
TS_OFF = 200 << 20
TAB, STG, RB, GW, RING = 0, 12288, 12288, 30720, 32768
UB, USTR = 32768, 4672
PART, CS = 53248, 16448
RED, AST = 86528, 147968
STG2, RB2 = 51456, 131072
LDS = 163840
sWV = 3; sX = 4; sW = 8; sWS = 12; sT = 16; sN = 20
sRB = 22; sCT = 23; sPAIR = 24; sRT = 25; sC2 = 26; sCH = 27; sOX = 28; sOW = 29; sA = 30; sB = 31
sK1 = 32; sK0 = 34; sKA = 36
pU, pAre, pLdt, pDsk, pW1, pB1, pW2, pB2, pGw, pOut, pDbg, pWs = 36, 38, 50, 52, 56, 58, 60, 62, 64, 66, 68, 70
sSL = 37; sWO = 72; sHO = 86; sSPIN = 100; sC = 101
sLD = 0
vL, vN, vG = 1, 2, 3
vP1 = 4
vNON = 10
vDX, vDW = 16, 20
vP0 = 36
vW2a, vW2b, vH = 56, 57, 58
vGv, vF0 = 62, 63
vTS = 230
_uid = [0]
def lab(b):
    _uid[0] += 1; return f"{b}{_uid[0]}"
SLOW = []
def ts(p, slot):
    if not OPT["ts"]: return
    p(f"{'s_memtime' if OPT['ts'] == 2 else 's_memrealtime'} s[{sA}:{sA+1}]\ns_waitcnt lgkmcnt(0)\nv_writelane_b32 v{vTS}, s{sA}, {slot}\nv_writelane_b32 v{vTS+1}, s{sA+1}, {slot}")
def w2reg(u): return ar(4*u, 4) if u < 64 else vr(232 + 4*(u-64), 4)
def w2loads(lo, hi):
    g = []
    for u in range(lo, hi):
        j, db = divmod(u, 5)
        if db < 4: g.append([I(f"buffer_load_dwordx4 {w2reg(u)}, v{vW2a}, s[{sWS}:{sWS+3}], s{sWO+j} offen offset:{db*1024} sc1", f"w2_{j}")])
        else: g.append([I(f"buffer_load_dwordx4 {w2reg(u)}, v{vW2b}, s[{sWS}:{sWS+3}], s{sWO+j} offen sc1", f"w2_{j}")])
    return g
def poll_issue(p, vdst, vaddr, tag):
    p(f"buffer_load_dwordx2 v[{vdst}:{vdst+1}], v{vaddr}, s[{sWS}:{sWS+3}], 0 offen sc1", tag)
def poll_check(p, vdst, vaddr, tag):
    ls, lb = lab("slow"), lab("back")
    p.wvm(tag)
    p(f"v_cmp_ne_u64 vcc, v[{vdst}:{vdst+1}], s[{sN}:{sN+1}]\ns_cbranch_vccnz {ls}\n{lb}:")
    SLOW.append(f"""{ls}:
s_mov_b32 s{sSPIN}, 0
{ls}l:
buffer_load_dwordx2 v[{vdst}:{vdst+1}], v{vaddr}, s[{sWS}:{sWS+3}], 0 offen sc1
s_add_u32 s{sSPIN}, s{sSPIN}, 1
s_cmp_ge_u32 s{sSPIN}, 0x8000
s_cbranch_scc1 {ls}x
s_waitcnt vmcnt(0)
v_cmp_ne_u64 vcc, v[{vdst}:{vdst+1}], s[{sN}:{sN+1}]
s_cbranch_vccnz {ls}l
{ls}x:
s_waitcnt vmcnt(0)
s_branch {lb}
""")
def flag_store(p, sreg):
    p(f"buffer_store_dwordx2 v[{vNON}:{vNON+1}], v{vF0}, s[{sWS}:{sWS+3}], s{sreg} offen sc1", "flag")
def mod10(p, d, s, t):
    p(f"s_mul_i32 s{t}, s{s}, 6554\ns_lshr_b32 s{t}, s{t}, 16\ns_mul_i32 s{t}, s{t}, 10\ns_sub_u32 s{d}, s{s}, s{t}")
def srd(p, d, ptr, n):
    p(f"s_mov_b32 s{d}, s{ptr}\ns_mov_b32 s{d+1}, s{ptr+1}\ns_mov_b32 s{d+2}, {n}\ns_mov_b32 s{d+3}, 0x20000")

def entry():
    p = P()
    p(f"""s_cmp_ge_u32 s2, 256
    s_cbranch_scc1 L_end
    s_load_dwordx16 s[36:51], s[0:1], 0
    s_load_dwordx16 s[52:67], s[0:1], 64
    s_load_dwordx4 s[68:71], s[0:1], 128""")
    p(f"{'s_memtime' if OPT['ts'] == 2 else 's_memrealtime'} s[{sK1}:{sK1+1}]")
    p(f"""v_lshrrev_b32 v4, 6, v0
    v_and_b32 v{vL}, 63, v0
    v_readfirstlane_b32 s{sWV}, v4
    v_and_b32 v{vN}, 15, v0
    v_bfe_u32 v{vG}, v0, 4, 2
    s_and_b32 s{sA}, s2, 7
    s_lshr_b32 s{sB}, s2, 3
    s_lshr_b32 s{sOX}, s{sA}, 1
    s_and_b32 s{sOW}, s{sA}, 1""")
    if OPT.get("map", 0): p(f"""s_lshl_b32 s{sRT}, s{sA}, 2
    s_and_b32 s{sC}, s{sB}, 3
    s_add_u32 s{sRT}, s{sRT}, s{sC}
    s_lshr_b32 s{sC2}, s{sB}, 2""")
    else: p(f"""s_lshl_b32 s{sRT}, s{sOX}, 3
    s_lshr_b32 s{sC}, s{sB}, 2
    s_add_u32 s{sRT}, s{sRT}, s{sC}
    s_lshl_b32 s{sC2}, s{sOW}, 2
    s_and_b32 s{sC}, s{sB}, 3
    s_add_u32 s{sC2}, s{sC2}, s{sC}""")
    p(f"""s_cmp_ge_u32 s{sB}, 30
    s_cbranch_scc1 L_C
    s_cmp_ge_u32 s{sB}, 24
    s_cbranch_scc1 L_B""")
    return p
def prefetch_code(p, role):
    l = lab("pc")
    p(f"""s_getpc_b64 s[{sN}:{sN+1}]
    {l}:
    v_lshlrev_b32 v4, 7, v0
    v_min_u32 v4, L_{role}_end-{l}-4, v4
    global_load_dword v229, v4, s[{sN}:{sN+1}]""", "pf")
def params_issue(p, role):
    p(f"""s_lshl_b32 s{sC}, s{sPAIR}, 9
    v_lshlrev_b32 v5, 1, v0
    v_add_u32 v12, s{sC}, v5
    s_lshl_b32 s{sC}, s{sPAIR}, 2
    s_waitcnt lgkmcnt(0)""")
    if OPT["ts"]: p(f"v_writelane_b32 v{vTS}, s{sK1}, 0\nv_writelane_b32 v{vTS+1}, s{sK1+1}, 0")
    if role == "A": nonce_pub(p)
    for i in range(6): p(f"global_load_ushort v{vP0+i}, v12, s[{pAre+2*i}:{pAre+2*i+1}]", "par0")
    if role != "A":
        for i in range(6): p(f"global_load_ushort v{vP1+i}, v12, s[{pAre+2*i}:{pAre+2*i+1}] offset:512", "par1")
    p(f"""s_add_u32 s{pLdt}, s{pLdt}, s{sC}
    s_addc_u32 s{pLdt+1}, s{pLdt+1}, 0
    s_add_u32 s{pDsk}, s{pDsk}, s{sC}
    s_addc_u32 s{pDsk+1}, s{pDsk+1}, 0""")
    if role == "A":
        p(f"s_load_dword s0, s[{pLdt}:{pLdt+1}], 0\ns_load_dword s54, s[{pDsk}:{pDsk+1}], 0")
    else:
        p(f"s_load_dwordx2 s[0:1], s[{pLdt}:{pLdt+1}], 0\ns_load_dwordx2 s[54:55], s[{pDsk}:{pDsk+1}], 0")
    srd(p, sWS, pWs, WSREC)
def nonce_pub(p):
    l = lab("np")
    p(f"""s_or_b32 s{sSPIN}, s2, s{sWV}
    s_cmp_lg_u32 s{sSPIN}, 0
    s_cbranch_scc1 {l}
    v_mov_b32 v13, 0
    s_or_b32 s{sK1+1}, s{sK1+1}, 0x40000000
    v_mov_b32 v14, s{sK1}
    v_mov_b32 v15, s{sK1+1}
    s_mov_b64 exec, 1
    global_store_dwordx2 v13, v[14:15], s[{pDbg}:{pDbg+1}] sc1
    s_mov_b64 exec, -1
    {l}:""")
def nonce_issue(p):
    p(f"v_mov_b32 v13, 0\nglobal_load_dwordx2 v[{vNON}:{vNON+1}], v13, s[{pDbg}:{pDbg+1}] sc1", "non")
def nonce_check(p):
    ls, lb = lab("slow"), lab("back")
    p.wvm("non")
    p(f"""v_readfirstlane_b32 s{sN+1}, v{vNON+1}
    v_readfirstlane_b32 s{sN}, v{vNON}
    s_cmp_eq_u32 s{sN+1}, 0
    s_cbranch_scc1 {ls}
    {lb}:""")
    SLOW.append(f"""{ls}:
s_mov_b32 s{sSPIN}, 0
v_mov_b32 v13, 0
{ls}l:
global_load_dwordx2 v[{vNON}:{vNON+1}], v13, s[{pDbg}:{pDbg+1}] sc1
s_add_u32 s{sSPIN}, s{sSPIN}, 1
s_waitcnt vmcnt(0)
v_readfirstlane_b32 s{sN+1}, v{vNON+1}
v_readfirstlane_b32 s{sN}, v{vNON}
s_cmp_ge_u32 s{sSPIN}, 0x8000
s_cbranch_scc1 {ls}x
s_cmp_eq_u32 s{sN+1}, 0
s_cbranch_scc1 {ls}l
{ls}x:
s_nop 4
s_branch {lb}
""")
def g2_offsets():
    p = P()
    p(f"""s_and_b32 s42, s{sSL}, 3
    s_mul_i32 s42, s42, {OPT.get("r2a", 3)}
    s_lshr_b32 s43, s{sSL}, 2
    s_mul_i32 s43, s43, {OPT.get("r2b", 5)}
    s_add_u32 s42, s42, s43
    s_mul_i32 s43, s42, 5042
    s_lshr_b32 s43, s43, 16
    s_mul_i32 s43, s43, 13
    s_sub_u32 s42, s42, s43
    s_mul_i32 s43, s{sWV}, 14
    s_cmp_eq_u32 s{sWV}, 3
    s_cselect_b32 s44, 1, 0
    s_sub_u32 s43, s43, s44
    s_cmp_lt_u32 s{sWV}, 2
    s_cselect_b32 s44, 14, 13
    s_add_u32 s44, s44, s43
    s_add_u32 s42, s42, s43
    s_mul_i32 s45, s{sC2}, {54*5120}
    s_add_u32 s45, s45, {W2P}
    s_mul_i32 s46, s{sRT}, {54*4096}""")
    for j in range(14):
        p(f"""s_mul_i32 s{sWO+j}, s42, 5120
        s_add_u32 s{sWO+j}, s{sWO+j}, s45
        s_lshl_b32 s{sHO+j}, s42, 12
        s_add_u32 s{sHO+j}, s{sHO+j}, s46""")
        if j < 13: p(f"s_add_u32 s42, s42, 1\ns_cmp_eq_u32 s42, s44\ns_cselect_b32 s42, s43, s42")
    p(f"""s_cmp_lt_u32 s{sWV}, 2
    s_cselect_b32 s{sWO+13}, s{sWO+13}, {OOB}
    s_cselect_b32 s{sHO+13}, s{sHO+13}, {OOB}""")
    g = []
    for i in p.l:
        if g and glued(i): g[-1].append(i)
        else: g.append([i])
    return g
def common_v():
    p = P()
    p(f"""v_cmp_eq_u32 vcc, 0, v0
    v_mov_b32 v{vF0}, {OOB}
    v_lshlrev_b32 v{vW2a}, 4, v{vL}
    v_cndmask_b32 v{vF0}, v{vF0}, 0, vcc
    v_add_u32 v{vW2b}, 4096, v{vW2a}""")
    for s in range(4):
        p(f"s_xor_b32 s{sC}, s{sWV}, {s}\ns_lshl_b32 s{sC}, s{sC}, 10\nv_add_u32 v{vH+s}, s{sC}, v{vW2a}")
    return p

def delay_ds(l, n):
    out = []; q = []
    for i in l:
        if i.tag == "stw" and i.cls == "ds": q.append([i, n]); continue
        if i.op.startswith("ds_read"): out += [x[0] for x in q]; q = []
        while any(x[0].src & i.dst for x in q): out.append(q.pop(0)[0])
        out.append(i)
        for x in q: x[1] -= 1
        if q and q[0][1] <= 0: out.append(q.pop(0)[0])
    return out + [x[0] for x in q]
def cmul(p, d, a, b):
    p(f"v_pk_mul_f32 v[{d}:{d+1}], v[{a}:{a+1}], v[{b}:{b+1}] op_sel:[0,0] op_sel_hi:[0,1]")
    p(f"v_pk_fma_f32 v[{d}:{d+1}], v[{a}:{a+1}], v[{b}:{b+1}], v[{d}:{d+1}] op_sel:[1,1,0] op_sel_hi:[1,0,1] neg_lo:[1,0,0]")
def kgen(par, sld, sdsk, fill, t0, dt, pre_bar=None, post_bar=None, tid=0, STG=STG, RB=RB):
    p = P()
    E = 64
    F = 80
    Bc, E8, W = 112, 116, 118
    AL, BE, DT, T0, T1, T2, T3 = 120, 121, 122, 123, 124, 125, 126
    CV = 128
    TM = 136
    BF, AF, ACC = 144, 160, 176
    vSW, vSR, vA0, vA1, vA2, vA3 = 188, 189, 190, 191, 224, 225
    Ek = lambda k: E + 2*(k-1)
    Fk = lambda k: F + 2*(k-1)
    p(f"""s_lshr_b32 s{sC}, s{sWV}, 1
    s_lshl_b32 s{sC}, s{sC}, 4
    s_lshr_b32 s{sld}, s{sld}, s{sC}
    s_lshl_b32 s{sld}, s{sld}, 16
    s_lshr_b32 s{sdsk}, s{sdsk}, s{sC}
    s_lshl_b32 s{sdsk}, s{sdsk}, 16
    v_mov_b32 v{DT}, 0x3fb8aa3b
    v_mul_f32 v{DT}, s{sld}, v{DT}
    s_mul_i32 s{sC}, s{sWV}, 4608
    v_exp_f32 v{DT}, v{DT}
    s_add_u32 s{sC}, s{sC}, {STG}
    v_lshl_add_u32 v{vSW}, v{vL}, 2, s{sC}
    {f"s_mov_b32 m0, s{sC}" if tid else ""}
    v_cvt_pk_bf16_f32 v{DT}, v{DT}, v{DT}
    v_mul_u32_u24 v{vSR}, 288, v{vN}
    v_lshlrev_b32 v{DT}, 16, v{DT}
    v_lshl_add_u32 v{vSR}, v{vG}, 4, v{vSR}
    v_add_u32 v{vSR}, s{sC}, v{vSR}""")
    p.wvm("par0"); p.wvm("par1")
    for i in range(6): p(f"v_lshlrev_b32 v{par+i}, 16, v{par+i}")
    p(f"""v_mul_f32 v{AL}, v{DT}, v{par}
    v_mul_f32 v{BE}, v{DT}, v{par+1}
    v_mul_f32 v{AL}, 0x3fb8aa3b, v{AL}
    v_mul_f32 v{BE}, 0x3e22f983, v{BE}
    v_mul_f32 v{T0}, 0x41000000, v{AL}
    v_mul_f32 v{T1}, 0xc1000000, v{BE}
    v_exp_f32 v{T0}, v{T0}
    v_fract_f32 v{T1}, v{T1}
    v_mul_f32 v{par+2}, v{DT}, v{par+2}
    v_cos_f32 v{E8}, v{T1}
    v_sin_f32 v{E8+1}, v{T1}
    v_mul_f32 v{par+3}, v{DT}, v{par+3}
    v_pk_mul_f32 v[{E8}:{E8+1}], v[{E8}:{E8+1}], v[{T0-1}:{T0}] op_sel:[0,1] op_sel_hi:[1,1]""")
    p(f"""v_mul_f32 v{Bc}, v{par+4}, v{par+2}
    v_mul_f32 v{Bc+1}, v{par+4}, v{par+3}
    v_fma_f32 v{Bc}, -v{par+5}, v{par+3}, v{Bc}
    v_fma_f32 v{Bc+1}, -v{par+5}, v{par+2}, -v{Bc+1}""")
    cvi = [0]
    def put(row, reg):
        c = CV + cvi[0] % 8; cvi[0] += 1
        p(f"v_cvt_pk_bf16_f32 v{c}, v{reg}, v{reg+1}")
        if "w" in OPT.get("x3", ""): return
        if tid: p(f"ds_write_addtid_b32 v{c} offset:{row*288}", "stw")
        else: p(f"ds_write_b32 v{vSW}, v{c} offset:{row*288}", "stw")
    def expk(d, k):
        q = P()
        q(f"""v_mul_f32 v{T2}, {k}, v{AL}
        v_mul_f32 v{T3}, {k}, v{BE}
        v_exp_f32 v{T2}, v{T2}
        v_fract_f32 v{T3}, v{T3}
        v_cos_f32 v{d}, v{T3}
        v_sin_f32 v{d+1}, v{T3}
        s_nop 0
        v_pk_mul_f32 v[{d}:{d+1}], v[{d}:{d+1}], v[{T2-1}:{T2}] op_sel:[0,1] op_sel_hi:[1,1]""")
        return q
    assert T0 % 2 == 1 and T2 % 2 == 1
    cur = Bc
    for j in range(16):
        put(j, cur)
        if j < 15:
            nx = Bc + 2 if cur == Bc else Bc
            cmul(p, nx, cur, E8); cur = nx
    for ks in range(4): p(f"ds_read_b128 v[{BF+4*ks}:{BF+4*ks+3}], v{vSR} offset:{64*ks}", "bf")
    p.ext(expk(Ek(1), "1.0")); p.ext(expk(Fk(1), "0x43000000"))
    p(f"v_mov_b32 v{CV+7}, 0x3f80"); p(f"ds_write_b32 v{vSW}, v{CV+7}", "stw")
    put(1, Ek(1)); put(8, Fk(1))
    for k, (a, b) in {2: (1, 1), 3: (2, 1), 4: (2, 2), 5: (4, 1), 6: (4, 2), 7: (4, 3)}.items():
        cmul(p, Ek(k), Ek(a), Ek(b)); put(k, Ek(k))
    tm = [0]
    def prod(row, a, b):
        t = TM + 2*(tm[0] % 4); tm[0] += 1
        cmul(p, t, a, b); put(row, t)
    for k in range(1, 8): prod(8 + k, Fk(1), Ek(k))
    def rdA():
        for ks in range(4): p(f"ds_read_b128 v[{AF+4*ks}:{AF+4*ks+3}], v{vSR} offset:{64*ks}", "af")
    def mm(blk):
        p.wlg("af")
        for ks in range(4):
            p(f"v_mfma_f32_16x16x32_bf16 v[{ACC+4*blk}:{ACC+4*blk+3}], v[{AF+4*ks}:{AF+4*ks+3}], v[{BF+4*ks}:{BF+4*ks+3}], " + ("0" if ks == 0 else f"v[{ACC+4*blk}:{ACC+4*blk+3}]"))
    rdA()
    for k, (a, b) in {2: (1, 1), 3: (2, 1), 4: (2, 2), 5: (4, 1), 6: (4, 2), 7: (4, 3), 8: (4, 4)}.items(): cmul(p, Fk(k), Fk(a), Fk(b))
    mm(0)
    for i, f in enumerate((2, 3)):
        put(4*i, Fk(f))
        for u, e in enumerate((2, 4, 6)): prod(4*i + 1 + u, Fk(f), Ek(e))
    for i, f in enumerate((4, 5, 6, 7)):
        put(8 + 2*i, Fk(f)); prod(9 + 2*i, Fk(f), Ek(4))
    rdA()
    for k in range(9, 17): cmul(p, Fk(k), Fk(8), Fk(k-8))
    mm(1)
    for k in range(8, 17): put(k - 8, Fk(k))
    rdA()
    p(f"""s_mul_i32 s{sC}, s{sWV}, 3072
    v_lshrrev_b32 v{T0}, 1, v{vG}
    v_and_b32 v{T1}, 1, v{vG}
    v_lshlrev_b32 v{vA0}, 9, v{T0}
    v_lshl_add_u32 v{vA0}, v{vN}, 5, v{vA0}
    v_lshl_add_u32 v{vA0}, v{T1}, 4, v{vA0}
    v_add_u32 v{vA0}, s{sC}, v{vA0}
    v_sub_u32 v{T1}, 4, v{T0}
    v_lshlrev_b32 v{vA1}, v{T1}, v{vN}
    v_lshl_add_u32 v{vA3}, v{vG}, 8, s{sC}
    v_add_u32 v{vA1}, v{vA1}, v{vA3}
    v_mul_u32_u24 v{T0}, 120, v{T0}
    v_add3_u32 v{vA2}, v{vA1}, v{T0}, 8
    v_lshl_add_u32 v{vA3}, v{vN}, 2, v{vA3}""")
    mm(2)
    p(f"ds_write_b128 v{vA0}, v[{ACC}:{ACC+3}]", "tw")
    p(f"ds_write_b64 v{vA1}, v[{ACC+4}:{ACC+5}] offset:1024", "tw")
    p(f"ds_write_b64 v{vA2}, v[{ACC+6}:{ACC+7}] offset:1024", "tw")
    for i in range(4): p(f"ds_write_b32 v{vA3}, v{ACC+8+i} offset:{2048+64*i}", "tw")
    p.l = delay_ds(p.l, OPT.get("dly", 3))
    if OPT.get('v'): print('kgen body', tlen(p.l), len(fill))
    body = cweave(p.l, fill, t0, dt)
    p = P(); p.ext(body)
    if OPT.get("x2"): ts(p, 8)
    vT, vR, X, Y, Z, O = 64, 65, 66, 68, 76, 84
    X2, Y2, Z2 = 67, 72, 80
    vA, vBb = 92, 93
    if pre_bar: p.ext(pre_bar)
    p(f"""s_lshr_b32 s{sC}, s{sWV}, 1
    s_mul_i32 s{sSPIN}, s{sC}, 6144
    s_mul_i32 s{sC}, s{sC}, 8320
    s_add_u32 s{sC}, s{sC}, {RB + 4080}
    v_lshlrev_b32 v{vR}, 4, v{vL}
    v_sub_u32 v{vR}, s{sC}, v{vR}
    s_and_b32 s{sC}, s{sWV}, 1
    s_lshl_b32 s{sC}, s{sC}, 8
    s_add_u32 s{sC}, s{sC}, s{sSPIN}
    v_lshl_add_u32 v{vT}, v{vL}, 2, s{sC}""")
    p("s_waitcnt lgkmcnt(0)\ns_barrier")
    if post_bar: p.ext(post_bar)
    S0, S1, S2, S3 = 94, 95, 96, 97
    p(f"ds_read_b32 v{S0}, v{vT} offset:2048\nds_read_b32 v{S1}, v{vT} offset:2052\nds_read_b32 v{S2}, v{vT} offset:{2048+3072}\nds_read_b32 v{S3}, v{vT} offset:{2052+3072}", "s3")
    l1, l2 = lab("ex"), lab("ex")
    p(f"s_bitcmp1_b32 s{sWV}, 0\ns_cbranch_scc1 {l1}")
    p(f"""v_cmp_gt_u32 vcc, 32, v{vL}
    v_lshlrev_b32 v{vA}, 5, v{vL}
    v_lshl_add_u32 v{vBb}, v{vL}, 4, 0x200
    v_cndmask_b32 v{vBb}, v{vBb}, v{vA}, vcc
    v_cmp_ge_u32 vcc, 32, v{vL}
    v_add_u32 v{vA}, -4, v{vA}
    v_max_i32 v{vA}, 0, v{vA}
    v_cndmask_b32 v{vA}, v{vBb}, v{vA}, vcc
    v_add_u32 v{vBb}, s{sSPIN}, v{vBb}
    v_add_u32 v{vA}, s{sSPIN}, v{vA}""".replace("4, 0x200", f"4, s{sA}").replace(f"v_cmp_gt_u32 vcc, 32, v{vL}", f"s_movk_i32 s{sA}, 0x200\nv_cmp_gt_u32 vcc, 32, v{vL}"))
    p(f"""ds_read_b128 v[{Y}:{Y+3}], v{vBb}
    ds_read_b128 v[{Y2}:{Y2+3}], v{vBb} offset:3072
    ds_read_b128 v[{Z}:{Z+3}], v{vBb} offset:16
    ds_read_b128 v[{Z2}:{Z2+3}], v{vBb} offset:3088
    ds_read_b32 v{X}, v{vA}
    ds_read_b32 v{X2}, v{vA} offset:3072""", "p0")
    p(f"""v_cmp_eq_u32 vcc, 0, v{vL}
    v_mov_b32 v{vA}, s{sdsk}
    s_mov_b32 s{sA}, 0
    s_mov_b32 s{sA+1}, -1
    v_cndmask_b32 v{vA}, 0, v{vA}, vcc
    s_waitcnt lgkmcnt(0)
    v_pk_add_f32 v[{Y}:{Y+1}], v[{Y}:{Y+1}], v[{Y2}:{Y2+1}]
    v_pk_add_f32 v[{Y+2}:{Y+3}], v[{Y+2}:{Y+3}], v[{Y2+2}:{Y2+3}]
    v_pk_add_f32 v[{Z}:{Z+1}], v[{Z}:{Z+1}], v[{Z2}:{Z2+1}]
    v_pk_add_f32 v[{Z+2}:{Z+3}], v[{Z+2}:{Z+3}], v[{Z2+2}:{Z2+3}]
    v_add_f32 v{X}, v{X}, v{X2}
    v_cndmask_b32 v{X}, v{X}, 0, vcc""")
    D = [Y, Y2, Y2+1, Y2+2, Y2+3, Z2, Z2+1, Z2+2]
    s0 = [None, Y+1, Y+2, Y+3, Z, Z+1, Z+2, Z+3]; s1 = [None, Y, Y+1, Y+2, Y+2, Y+2, Y+3, Z]
    for k in range(1, 8): p(f"v_cndmask_b32 v{D[k]}, v{s0[k]}, v{s1[k]}, s[{sA}:{sA+1}]")
    p(f"v_add_f32 v{Y}, v{Y}, v{vA}")
    def packs(d, dm1):
        for i in range(4): p(f"v_cvt_pk_bf16_f32 v{O+i}, v{d[7-2*i]}, v{d[6-2*i]}")
        for i in range(4): p(f"v_cvt_pk_bf16_f32 v{O+4+i}, v{d[6-2*i]}, v{d[5-2*i] if i < 3 else dm1}")
    packs(D, X)
    p(f"ds_write_b128 v{vR}, v[{O}:{O+3}]\nds_write_b128 v{vR}, v[{O+4}:{O+7}] offset:4160\nv_add_u32 v{vR}, -2048, v{vR}\ns_branch {l2}\n{l1}:")
    p(f"v_lshl_add_u32 v{vA}, v{vL}, 3, s{sSPIN}")
    p(f"""ds_read_b64 v[{Y}:{Y+1}], v{vA} offset:1536
    ds_read_b64 v[{Y2}:{Y2+1}], v{vA} offset:{1536+3072}
    ds_read_b32 v{Y+2}, v{vA} offset:1544
    ds_read_b32 v{Y2+2}, v{vA} offset:{1544+3072}""", "p1")
    p(f"""v_and_b32 v{vBb}, 1, v{vL}
    v_bfe_u32 v{X}, v{vL}, 1, 1
    v_mul_u32_u24 v{vBb}, 4160, v{vBb}
    s_lshr_b32 s{sC}, s{sWV}, 1
    s_mul_i32 s{sC}, s{sC}, 8320
    s_add_u32 s{sC}, s{sC}, {RB}
    v_lshl_add_u32 v{vBb}, v{X}, 4, v{vBb}
    v_mov_b32 v{Z}, 0
    v_mov_b32 v{Z+1}, 0
    v_mov_b32 v{Z+2}, 0
    v_mov_b32 v{Z+3}, 0
    v_add_u32 v{vBb}, s{sC}, v{vBb}
    v_add_u32 v{vR}, -1024, v{vR}
    ds_write_b128 v{vBb}, v[{Z}:{Z+3}] offset:4096
    s_waitcnt lgkmcnt(0)
    v_pk_add_f32 v[{Y}:{Y+1}], v[{Y}:{Y+1}], v[{Y2}:{Y2+1}]
    v_add_f32 v{Y+2}, v{Y+2}, v{Y2+2}""")
    packs([Y, Y, Y, Y+1, Y+1, Y+1, Y+2, Y+2], Y)
    p(f"ds_write_b128 v{vR}, v[{O}:{O+3}]\nds_write_b128 v{vR}, v[{O+4}:{O+7}] offset:4160\nv_add_u32 v{vR}, -2048, v{vR}\n{l2}:")
    p(f"""v_and_b32 v{X}, 1, v{vL}
    v_add_f32 v{S0}, v{S0}, v{S2}
    v_cmp_eq_u32 vcc, 1, v{X}
    v_add_f32 v{S1}, v{S1}, v{S3}
    s_nop 0
    v_cndmask_b32 v{S2}, v{S0}, v{S1}, vcc""")
    O = 98
    packs([S0, S0, S0, S0, S2, S1, S1, S1], S0)
    p(f"ds_write_b128 v{vR}, v[{O}:{O+3}]\nds_write_b128 v{vR}, v[{O+4}:{O+7}] offset:4160", "rw")
    return p
```

```python
from gen1 import *
sMX, sMW, sGC, sUS, sT1, sT2 = 47, 48, 49, 50, 51, 52
ACC1 = 64; FX = (128, 160); FW = (144, 176); BIAS = 192; GACC = 208; GF = (224, 4)
vXA, vWA = 24, 28
def dma_x(step):
    g = [I(f"s_add_u32 m0, s{sMX}, {(step & 3)*32768}")]
    for i in range(4): g.append(I(f"buffer_load_dwordx4 v{vDX+i}, s[{sX}:{sX+3}], s{sOX} offen offset:{i*1024} lds", f"st{step}"))
    return g
def dma_w(step, nw):
    g = [I(f"s_add_u32 m0, s{sMW}, {(step & 3)*32768}")]
    for i in range(nw): g.append(I(f"buffer_load_dwordx4 v{vDW+i}, s[{sW}:{sW+3}], s{sOW} offen offset:{i*1024} lds", f"st{step}"))
    g += P()(f"""s_add_u32 s{sCH}, s{sCH}, 1
    s_cmp_eq_u32 s{sCH}, 10
    s_cselect_b32 s{sCH}, 0, s{sCH}
    s_lshl_b32 s{sOX}, s{sCH}, 7
    s_mul_i32 s{sOW}, s{sCH}, 221184""").l
    return g
def g1_setup(role):
    p = P(); nw = 4 if role == "A" else 2
    srd(p, sX, pU, 2048*1280); srd(p, sW, pW1, 640*3456)
    p(f"""s_lshl_b32 s{sOX}, s{sCH}, 7
    s_mul_i32 s{sOW}, s{sCH}, 221184
    s_lshl_b32 s{sMX}, s{sWV}, 12
    s_add_u32 s{sMX}, s{sMX}, {RING}
    s_lshl_b32 s{sMW}, s{sWV}, {12 if role == "A" else 11}
    s_add_u32 s{sMW}, s{sMW}, {RING + 16384}
    s_lshl_b32 s{sC}, s{sRB}, 2
    s_add_u32 s{sC}, s{sC}, s{sWV}
    s_mul_i32 s{sC}, s{sC}, {32*1280}
    v_lshrrev_b32 v64, 3, v{vL}
    v_and_b32 v65, 7, v{vL}
    v_xor_b32 v66, v64, v65
    v_mul_u32_u24 v67, 1280, v64
    v_lshl_add_u32 v67, v66, 4, v67
    v_add_u32 v{vDX}, s{sC}, v67""")
    for i in range(1, 4): p(f"v_add_u32 v{vDX+i}, {i*9216}, v{vDX}")
    p(f"s_mul_i32 s{sC}, s{sWV}, {16*3456}")
    if role == "A":
        p(f"""s_lshl_b32 s{sSPIN}, s{sCT}, 8
        s_add_u32 s{sC}, s{sC}, s{sSPIN}
        v_mul_u32_u24 v67, 3456, v{vG}
        v_and_b32 v64, 1, v{vL}
        v_lshl_add_u32 v67, v64, 4, v67
        v_add_u32 v67, s{sC}, v67
        v_lshrrev_b32 v65, 1, v{vN}
        v_xor_b32 v65, v65, v{vG}
        v_xor_b32 v66, 4, v65
        v_lshl_add_u32 v{vDW}, v65, 5, v67
        v_lshl_add_u32 v{vDW+2}, v66, 5, v67
        v_add_u32 v{vDW+1}, {4*3456-1024}, v{vDW}
        v_add_u32 v{vDW+3}, {3*(4*3456-1024)}, v{vDW+2}
        v_add_u32 v{vDW+2}, {2*(4*3456-1024)}, v{vDW+2}""")
    else:
        p(f"""s_lshl_b32 s{sSPIN}, s{sCT}, 7
        s_add_u32 s{sC}, s{sC}, s{sSPIN}
        s_add_u32 s{sC}, s{sC}, 3072
        v_mul_u32_u24 v67, 3456, v64
        v_and_b32 v64, 1, v{vL}
        v_lshl_add_u32 v67, v64, 4, v67
        v_add_u32 v67, s{sC}, v67
        v_lshrrev_b32 v65, 1, v65
        v_and_b32 v64, 1, v{vG}
        v_xor_b32 v65, v65, v64
        v_xor_b32 v66, 2, v65
        v_lshl_add_u32 v{vDW}, v65, 5, v67
        v_lshl_add_u32 v{vDW+1}, v66, 5, v67
        v_add_u32 v{vDW+1}, {8*3456-1024}, v{vDW+1}""")
    return p
def g1_bias_issue(role):
    p = P(); nfb = 4 if role == "A" else 2
    if role == "A": p(f"s_lshl_b32 s{sC}, s{sCT}, 8\ns_and_b32 s{sSPIN}, s{sWV}, 1\ns_lshl_b32 s{sSPIN}, s{sSPIN}, 7\ns_add_u32 s{sC}, s{sC}, s{sSPIN}")
    else: p(f"s_lshl_b32 s{sC}, s{sCT}, 7\ns_and_b32 s{sSPIN}, s{sWV}, 1\ns_lshl_b32 s{sSPIN}, s{sSPIN}, 6\ns_add_u32 s{sC}, s{sC}, s{sSPIN}\ns_add_u32 s{sC}, s{sC}, 3072")
    p(f"v_lshl_add_u32 v42, v{vG}, 3, s{sC}")
    for fb in range(nfb): p(f"global_load_dwordx2 v[{BIAS+8+2*fb}:{BIAS+9+2*fb}], v42, s[{pB1}:{pB1+1}] offset:{32*fb}", "bias")
    return p
def unpack(p, dst, raw, n):
    for i in range(n):
        p(f"""v_lshlrev_b32 v{dst+4*i}, 16, v{raw+2*i}
        v_and_b32 v{dst+4*i+1}, 0xffff0000, v{raw+2*i}
        v_lshlrev_b32 v{dst+4*i+2}, 16, v{raw+2*i+1}
        v_and_b32 v{dst+4*i+3}, 0xffff0000, v{raw+2*i+1}""")
def g1_addr(role):
    p = P(); nfb = 4 if role == "A" else 2
    p.wvm("bias")
    unpack(p, BIAS, BIAS + 8, nfb)
    p(f"""s_lshr_b32 s{sC}, s{sWV}, 1
    s_lshl_b32 s{sC}, s{sC}, 13
    s_add_u32 s{sC}, s{sC}, {RING}
    v_and_b32 v64, 7, v{vN}
    v_xor_b32 v64, v64, v{vG}
    v_lshl_add_u32 v65, v{vN}, 7, s{sC}
    v_lshl_add_u32 v{vXA}, v64, 4, v65
    v_xor_b32 v{vXA+1}, 64, v{vXA}
    v_add_u32 v{vXA+2}, 0x10000, v{vXA}
    v_add_u32 v{vXA+3}, 0x10000, v{vXA+1}
    v_bfe_u32 v66, v{vL}, 2, 2
    v_and_b32 v67, 3, v{vL}
    v_and_b32 v68, 1, v{vG}
    v_lshl_add_u32 v69, v{vG}, 3, v66
    s_and_b32 s{sC}, s{sWV}, 1""")
    if role == "A":
        p(f"""v_lshl_or_b32 v70, v68, 2, v66
        s_lshl_b32 s{sC}, s{sC}, 2
        v_lshlrev_b32 v69, 8, v69""")
    else:
        p(f"""v_lshrrev_b32 v70, 1, v66
        v_lshl_or_b32 v70, v68, 1, v70
        s_lshl_b32 s{sC}, s{sC}, 1
        v_lshlrev_b32 v69, 7, v69""")
    p(f"""v_xor_b32 v70, s{sC}, v70
    v_lshl_add_u32 v69, v67, 3, v69
    v_add_u32 v69, {RING+16384}, v69""")
    for fb in range(nfb):
        p(f"v_xor_b32 v71, {fb}, v70\nv_lshl_add_u32 v{vWA+fb}, v71, 5, v69\nv_add_u32 v{vWA+4+fb}, 0x10000, v{vWA+fb}")
    return p
def ut_setup():
    p = P()
    p(f"""s_lshl_b32 s{sC}, s{sWV}, 12
    s_add_u32 s{sC}, s{sC}, {RING}
    v_bfe_u32 v66, v{vL}, 2, 2
    v_and_b32 v67, 3, v{vL}
    v_lshl_add_u32 v69, v{vG}, 3, v66
    v_lshl_add_u32 v69, v69, 7, s{sC}
    v_and_b32 v71, 1, v{vL}
    v_lshl_add_u32 v69, v71, 3, v69
    v_lshrrev_b32 v71, 1, v67
    v_xor_b32 v71, v71, v66""")
    for k in range(4): p(f"v_xor_b32 v72, {2*k}, v71\nv_lshl_add_u32 v{52+k}, v72, 4, v69")
    p(f"""v_lshlrev_b32 v69, 14, v66
    v_lshl_add_u32 v69, v67, 4, v69
    v_lshl_add_u32 v69, v{vG}, 6, v69
    s_lshl_b32 s{sC}, s{sWV}, 8
    v_add_u32 v8, s{sC}, v69""")
    return p
def ut_xfer():
    g = [[]]
    for db in range(4):
        for h in range(2): g[0].append(I(f"ds_read_b64_tr_b16 a[{20+4*db+2*h}:{21+4*db+2*h}], v{52+(db ^ (2*h))} offset:{512*h}", f"ut{db}"))
    for db in range(4):
        g.append([I(f"@wlg ut{db}"), I(f"s_add_u32 s{sT1}, s{sUS}, {db*65536}"), I(f"buffer_store_dwordx4 a[{20+4*db}:{23+4*db}], v8, s[{sWS}:{sWS+3}], s{sT1} offen sc1", "uts")])
    return g
def frag_reads(role, step, ks, gate):
    nfb = 4 if role == "A" else 2
    hi = (step & 3) >> 1; lo = (step & 1) * 32768
    kso, ho = (8192, 1024) if role == "A" else (4096, 512)
    r = []
    def w(fb):
        for h in range(2): r.append([I(f"ds_read_b64_tr_b16 v[{FW[ks]+4*fb+2*h}:{FW[ks]+4*fb+2*h+1}], v{vWA+4*hi+fb} offset:{lo+ks*kso+h*ho}", f"f{ks}w{fb}")])
    def x(tb): r.append([I(f"ds_read_b128 v[{FX[ks]+4*tb}:{FX[ks]+4*tb+3}], v{vXA+2*hi+ks} offset:{lo+tb*2048}", f"f{ks}x{tb}")])
    w(0)
    for tb in range(4): x(tb)
    for fb in range(1, nfb): w(fb)
    if 'r' in OPT.get('x1', '') and step > 0: r = []
    if gate: r.append([I(f"ds_read_b128 v[{GF[ks]}:{GF[ks]+3}], v228 offset:{64*ks}", f"f{ks}")])
    return r
def mfmas(role, step, ks, gate):
    nfb = 4 if role == "A" else 2
    m = []
    first = step == 0 and ks == 0
    if 'm' in OPT.get('x1', '') and step > 0: return [I("s_nop 0") for _ in range(4*nfb)]
    for fb in range(nfb):
        for tb in range(4):
            a = ACC1 + (fb*4 + tb)*4
            c = f"v[{BIAS+4*fb}:{BIAS+4*fb+3}]" if first else f"v[{a}:{a+3}]"
            m.append(I(f"v_mfma_f32_16x16x32_bf16 v[{a}:{a+3}], v[{FW[ks]+4*fb}:{FW[ks]+4*fb+3}], v[{FX[ks]+4*tb}:{FX[ks]+4*tb+3}], {c}"))
    if gate:
        for tb in range(4):
            a = GACC + 4*tb
            m.append(I(f"v_mfma_f32_16x16x32_bf16 v[{a}:{a+3}], v[{GF[ks]}:{GF[ks]+3}], v[{FX[ks]+4*tb}:{FX[ks]+4*tb+3}], " + ("0" if first else f"v[{a}:{a+3}]")))
    return m
def fine(g):
    out = []
    for i in g:
        if out and glued(i): out[-1].append(i)
        else: out.append([i])
    return out
def gemm1(role, sched, bh={}):
    p = P(); nw = 4 if role == "A" else 2; gate = False
    nm = 4*nw; cap = OPT.get("cap", 2)
    BP = OPT.get("BP", 4) if role == "A" else 2
    items = []
    def place(g0, g, sp):
        c = 0; e = g0 - 1
        for x in g:
            if x[0].cls == "vmem": e = g0 + c*sp; c += 1
            items.append((e, x))
    if 'd' not in OPT.get('x1', ''):
        place(1, fine(dma_w(3, nw)), 4)
        for s in range(6): place((2*s+1)*nm + BP, fine(dma_x(s + 4)) + fine(dma_w(s + 4, nw)), 2*nm/(4 + nw))
    ex = []
    for hs, d in sorted(sched.items()): ex += [(hs*nm + 2 + k*nm/len(d), g) for k, g in enumerate(d)]
    if -2 in bh: p.wvm(bh[-2][0]); p.ext(bh[-2][1].l)
    p.wvm("st0"); p("s_waitcnt lgkmcnt(0)\ns_barrier")
    if role == "A": ts(p, 5)
    for g in frag_reads(role, 0, 0, gate): p.ext(g)
    mf = []; rd = []
    for hs in range(20):
        step, ks = hs >> 1, hs & 1
        m = [[i] for i in mfmas(role, step, ks, gate)]
        for k in range(nm):
            w = []
            if k % 4 == 0: w.append(I(f"@wlg f{ks}w{k//4}" if k else f"@wlg f{ks}x3"))
            m[k] = w + m[k]
        if ks == 1:
            q = P()
            if step < 9: q.wvm(f"st{step+1}")
            if step in bh: q.wvm(bh[step][0])
            q("s_waitcnt lgkmcnt(0)")
            if 'b' not in OPT.get('x1', ''): q("s_barrier")
            if step in bh: q.ext(bh[step][1].l)
            if role == "A" and step in (2, 5): ts(q, 6 + (step > 2))
            m[BP] = q.l + m[BP]
            if step < 9: rd += [(hs*nm + BP + k*(nm - BP)/len(r), g) for r in [frag_reads(role, step + 1, 0, gate)] for k, g in enumerate(r)]
        else: rd += [(hs*nm + OPT.get("R0", 1) + k*(nm - BP)/len(r), g) for r in [frag_reads(role, step, 1, gate)] for k, g in enumerate(r)]
        mf += m
    p.ext(slotfill(mf, [rd, items, ex], cap if role == "A" else 3))
    return p
def gelu(role, fill, fill2=[], defer=None):
    p = P(); ns = 2 if role == "A" else 1
    pre = P()
    pre(f"""s_lshl_b32 s{sUS}, s{sRB}, 1
    s_lshr_b32 s{sC}, s{sWV}, 1
    s_add_u32 s{sUS}, s{sUS}, s{sC}
    s_mul_i32 s{sUS}, s{sUS}, 221184
    s_and_b32 s{sC}, s{sWV}, 1""")
    if role == "A": pre(f"s_lshl_b32 s{sC}, s{sC}, 13\ns_add_u32 s{sUS}, s{sUS}, s{sC}\ns_lshl_b32 s{sC}, s{sCT}, 14\ns_add_u32 s{sUS}, s{sUS}, s{sC}")
    else: pre(f"s_lshl_b32 s{sC}, s{sC}, 12\ns_add_u32 s{sUS}, s{sUS}, s{sC}\ns_lshl_b32 s{sC}, s{sCT}, 13\ns_add_u32 s{sUS}, s{sUS}, s{sC}\ns_add_u32 s{sUS}, s{sUS}, {48*4096}")
    pre(f"""s_mov_b32 s{sK1}, 0xbdd2d3e8
    s_mov_b32 s{sK1+1}, 0xbdd2d3e8
    v_mov_b32 v128, 0xc0135761
    v_mov_b32 v129, 0xc0135761
    s_mov_b32 s{sK0}, 1.0
    s_mov_b32 s{sK0+1}, 1.0""")
    gi = 0
    for s in range(ns):
        for tb in range(4):
            T = 132 + 8*(gi & 1); O = 148 + 4*(gi % 3) if defer is None else 192 + 4*(gi % 4); gi += 1
            prs = [ACC1 + ((2*s + u//2)*4 + tb)*4 + 2*(u % 2) for u in range(4)]
            for u, a in enumerate(prs): p(f"v_pk_mul_f32 v[{T+2*u}:{T+2*u+1}], v[{a}:{a+1}], v[{a}:{a+1}]")
            for u, a in enumerate(prs): p(f"v_pk_fma_f32 v[{T+2*u}:{T+2*u+1}], v[{T+2*u}:{T+2*u+1}], s[{sK1}:{sK1+1}], v[128:129]")
            for u, a in enumerate(prs): p(f"v_pk_mul_f32 v[{T+2*u}:{T+2*u+1}], v[{T+2*u}:{T+2*u+1}], v[{a}:{a+1}]")
            for u in range(8): p(f"v_exp_f32_e64 v{T+u}, v{T+u}")
            for u in range(4): p(f"v_pk_add_f32 v[{T+2*u}:{T+2*u+1}], v[{T+2*u}:{T+2*u+1}], s[{sK0}:{sK0+1}]")
            for u in range(8): p(f"v_rcp_f32_e64 v{T+u}, v{T+u}")
            for u, a in enumerate(prs): p(f"v_pk_mul_f32 v[{T+2*u}:{T+2*u+1}], v[{T+2*u}:{T+2*u+1}], v[{a}:{a+1}]")
            for u in range(4): p(f"v_cvt_pk_bf16_f32 v{O+u}, v{T+2*u}, v{T+2*u+1}")
            st = I(f"buffer_store_dwordx4 v[{O}:{O+3}], v{vW2a if s == 0 else vW2b}, s[{sWS}:{sWS+3}], s{sUS} offen offset:{tb*1024} sc1", "hst")
            if defer is None: p.ext([st])
            else: defer.append([st])
    L = tlen(p.l)
    body = cweave(p.l, fill2, L*OPT.get("uw", 50)/100, 8)
    pre.ext(cweave(body, fill, 40, (L - 40)/max(1, len(fill))))
    return pre
sRS, sRD, sPF = 38, 39, 40
def rl_setup():
    p = P()
    srd(p, sT, pW2, 1728*1280)
    p(f"""s_and_b32 s{sC}, s2, 7
    s_mul_i32 s{sC}, s{sC}, 14
    s_add_u32 s{sC}, s{sC}, s{sSL}
    s_cmp_lt_u32 s{sSL}, 14
    s_cselect_b32 s41, s{sC}, 200
    s_lshr_b32 s{sSPIN}, s41, 1
    s_and_b32 s{sC}, s41, 1
    s_lshl_b32 s{sPF}, s{sC}, 2
    s_add_u32 s{sPF}, s{sPF}, s{sWV}
    s_lshl_b32 s{sPF}, s{sPF}, 6
    s_add_u32 s{sPF}, s{sPF}, s{sSPIN}
    s_lshl_b32 s{sPF}, s{sPF}, {FS}
    s_add_u32 s{sPF}, s{sPF}, {FLG_P}
    s_lshl_b32 s{sC}, s{sC}, 2
    s_add_u32 s{sC}, s{sC}, s{sWV}
    s_mul_i32 s{sRS}, s{sSPIN}, 40960
    s_mul_i32 s{sRD}, s{sSPIN}, 5120
    s_mul_i32 s{sSPIN}, s{sC}, 160
    s_add_u32 s{sRS}, s{sRS}, s{sSPIN}
    s_mul_i32 s{sSPIN}, s{sC}, 276480
    s_add_u32 s{sRD}, s{sRD}, s{sSPIN}
    s_add_u32 s{sRD}, s{sRD}, {W2P}
    s_cmp_lt_u32 s41, 108
    s_cselect_b32 s{sRS}, s{sRS}, {OOB}
    s_cselect_b32 s{sRD}, s{sRD}, {OOB}
    s_cselect_b32 s{sPF}, s{sPF}, {OOB}""")
    for i in range(3):
        p(f"""v_add_u32 v64, {64*i}, v{vL}
        v_mul_u32_u24 v65, 6554, v64
        v_lshrrev_b32 v65, 16, v65
        v_mul_u32_u24 v66, {1280-160}, v65
        v_lshl_add_u32 v{44+i}, v64, 4, v66""")
        if i: p(f"v_add_u32 v{44+i}, {-1024*i}, v{44+i}")
    p(f"""v_cmp_gt_u32 vcc, 32, v{vL}
    v_mov_b32 v64, {OOB}
    v_bfe_u32 v66, v{vL}, 2, 4
    v_cndmask_b32 v46, v64, v46, vcc
    v_mul_u32_u24 v66, 160, v66
    v_and_b32 v67, 3, v{vL}
    s_add_u32 s{sC}, s{sMX}, {3*32768}
    v_lshl_add_u32 v66, v67, 3, v66
    v_add_u32 v47, s{sC}, v66""")
    return p
def rl_dma():
    g = []
    for h in range(2):
        g.append(I(f"s_add_u32 m0, s{sMX}, {3*32768 + 16384*h}"))
        for i in range(3): g.append(I(f"buffer_load_dwordx4 v{44+i}, s[{sT}:{sT+3}], s{sRS} offen offset:{i*1024} lds", "rld"))
        if h == 0: g.append(I(f"s_add_u32 s{sRS}, s{sRS}, 20480"))
    return g
def rl_xfer():
    g = [[I("@wvm rld")]]
    for db in range(5):
        for h in range(2): g[0].append(I(f"ds_read_b64_tr_b16 a[{4*db+2*h}:{4*db+2*h+1}], v47 offset:{32*db + 16384*h}", f"rl{db}"))
    for db in range(5):
        g.append([I(f"@wlg rl{db}"), I(f"buffer_store_dwordx4 a[{4*db}:{4*db+3}], v{vW2a if db < 4 else vW2b}, s[{sWS}:{sWS+3}], s{sRD} offen offset:{(db & 3)*1024} sc1", "pst")])
    return g
def c_setup():
    p = P()
    srd(p, sX, pU, 2048*1280); srd(p, sT, pGw, 1280)
    p(f"""s_mov_b32 s{sOX}, 0
    s_lshl_b32 s{sMX}, s{sWV}, 15
    s_add_u32 s{sMX}, s{sMX}, {RING}
    s_lshl_b32 s{sC}, s{sRB}, 2
    s_add_u32 s{sC}, s{sC}, s{sWV}
    s_mul_i32 s{sC}, s{sC}, {32*1280}
    v_lshrrev_b32 v64, 3, v{vL}
    v_and_b32 v65, 7, v{vL}
    v_xor_b32 v66, v64, v65
    v_mul_u32_u24 v67, 1280, v64
    v_lshl_add_u32 v67, v66, 4, v67
    v_add_u32 v{vDX}, s{sC}, v67""")
    for i in range(1, 4): p(f"v_add_u32 v{vDX+i}, {i*9216}, v{vDX}")
    p(f"""s_and_b32 s{sC}, s{sWV}, 1
    s_lshl_b32 s{sC}, s{sC}, 10
    s_add_u32 m0, s{sC}, {GW}
    v_lshlrev_b32 v65, 4, v{vL}""")
    p(f"buffer_load_dwordx4 v65, s[{sT}:{sT+3}], s{sC} offen lds", "gw")
    return p
def dma_c(cc):
    g = [I(f"s_add_u32 m0, s{sMX}, {(cc & 7)*4096}")]
    for i in range(4): g.append(I(f"buffer_load_dwordx4 v{vDX+i}, s[{sX}:{sX+3}], s{sOX} offen offset:{i*1024} lds", f"cu{cc}"))
    g.append(I(f"s_add_u32 s{sOX}, s{sOX}, 128"))
    return g
def cgate():
    p = P()
    p(f"""v_and_b32 v64, 7, v{vN}
    v_xor_b32 v64, v64, v{vG}
    v_lshl_add_u32 v65, v{vN}, 7, s{sMX}
    v_lshl_add_u32 v{vXA}, v64, 4, v65
    v_xor_b32 v{vXA+1}, 64, v{vXA}
    v_lshlrev_b32 v{vXA+2}, 4, v{vG}""")
    def rd(cc):
        R = 64 + 24*(cc & 1)
        p.wvm(f"cu{cc}")
        for ks in range(2):
            p(f"ds_read_b128 v[{R+12*ks}:{R+12*ks+3}], v{vXA+2} offset:{GW + cc*128 + ks*64}", f"g{cc}")
            for tb in range(2): p(f"ds_read_b128 v[{R+12*ks+4+4*tb}:{R+12*ks+7+4*tb}], v{vXA+ks} offset:{(cc & 7)*4096 + tb*2048}", f"g{cc}")
    rd(0)
    for cc in range(10):
        if cc < 9: rd(cc + 1)
        p.wlg(f"g{cc}")
        if cc < 2: p.ext(dma_c(cc + 8))
        R = 64 + 24*(cc & 1)
        for ks in range(2):
            for tb in range(2):
                a = GACC + 4*tb + 8*ks
                p(f"v_mfma_f32_16x16x32_bf16 v[{a}:{a+3}], v[{R+12*ks}:{R+12*ks+3}], v[{R+12*ks+4+4*tb}:{R+12*ks+7+4*tb}], " + ("0" if cc == 0 else f"v[{a}:{a+3}]"))
    p(f"""s_lshl_b32 s{sT1}, s{sRB}, 2
    s_add_u32 s{sT1}, s{sT1}, s{sWV}
    s_lshl_b32 s{sT1}, s{sT1}, 7
    s_add_u32 s{sT1}, s{sT1}, {GBUF}
    v_and_b32 v64, 31, v{vL}
    v_cmp_eq_u32 vcc, 0, v{vG}
    v_lshlrev_b32 v64, 2, v64
    v_add_f32 v{GACC}, v{GACC}, v{GACC+8}
    v_add_f32 v{GACC+4}, v{GACC+4}, v{GACC+12}
    v_cndmask_b32 v{GACC}, v{GACC+4}, v{GACC}, vcc
    v_cmp_gt_u32 vcc, 32, v{vL}
    v_mov_b32 v65, {OOB}
    v_cvt_pk_bf16_f32 v{GACC}, v{GACC}, v{GACC}
    v_cndmask_b32 v64, v65, v64, vcc
    v_lshlrev_b32 v{GACC}, 16, v{GACC}
    v_mul_f32 v{GACC}, 0xbfb8aa3b, v{GACC}
    v_exp_f32 v{GACC}, v{GACC}
    v_add_f32 v{GACC}, 1.0, v{GACC}
    v_rcp_f32 v{GACC}, v{GACC}
    v_cvt_pk_bf16_f32 v{GACC}, v{GACC}, v{GACC}
    v_lshlrev_b32 v{GACC}, 16, v{GACC}""")
    p(f"buffer_store_dword v{GACC}, v64, s[{sWS}:{sWS+3}], s{sT1} offen sc1", "hst")
    return p
```

```python
from gen2 import *
import sys
from align import align
vPOLL = 14
def up_addr():
    p = P()
    p(f"""s_lshr_b32 s{sC}, s{sPAIR}, 5
    s_lshl_b32 s{sC}, s{sC}, {FS+4}
    s_add_u32 s{sC}, s{sC}, {FLG_U}
    v_lshl_add_u32 v13, v{vN}, {FS}, s{sC}""")
    poll_issue(p, vPOLL, 13, "pu")
    q = P()
    q(f"""s_mul_i32 s{sC}, s{sWV}, 14
    s_cmp_eq_u32 s{sWV}, 3
    s_subb_u32 s{sC}, s{sC}, 0
    s_lshr_b32 s{sSPIN}, s{sWV}, 1
    s_sub_u32 s{sSPIN}, 13, s{sSPIN}
    v_min_u32 v12, s{sSPIN}, v{vL}
    s_lshl_b32 s{sSPIN}, s{sC2}, 6
    s_add_u32 s{sC}, s{sC}, s{sSPIN}
    s_lshl_b32 s{sC}, s{sC}, {FS}
    s_add_u32 s{sC}, s{sC}, {FLG_P}
    v_lshl_add_u32 v12, v12, {FS}, s{sC}""")
    poll_issue(q, 226, 12, "pp")
    return [p.l, q.l]
def pflag():
    p = P()
    p(f"v_cmp_ne_u32 vcc, 0, v{vL}\nv_mov_b32 v12, {OOB}\nv_cndmask_b32 v12, 0, v12, vcc")
    p(f"buffer_store_dwordx2 v[{vNON}:{vNON+1}], v12, s[{sWS}:{sWS+3}], s{sPF} offen sc1", "flag")
    return p
def p_check():
    p = P(); poll_check(p, 226, 12, "pp"); return [p.l]
def u_issue(role):
    p = P()
    poll_check(p, vPOLL, 13, "pu")
    p(f"s_lshr_b32 s{sT1}, s{sPAIR}, 1\ns_lshl_b32 s{sT1}, s{sT1}, 14\ns_add_u32 s{sT1}, s{sT1}, {UT}")
    if role == "A":
        p(f"""s_and_b32 s{sC}, s{sPAIR}, 1
        s_lshl_b32 s{sC}, s{sC}, 5
        s_add_u32 s{sT1}, s{sT1}, s{sC}
        v_lshrrev_b32 v13, 1, v0
        v_and_b32 v14, 1, v0
        v_lshlrev_b32 v13, 6, v13
        v_lshl_add_u32 v13, v14, 4, v13
        s_add_u32 s{sT2}, s{sT1}, 8192""")
        p(f"buffer_load_dwordx4 v[36:39], v13, s[{sWS}:{sWS+3}], s{sT1} offen sc1\nbuffer_load_dwordx4 v[40:43], v13, s[{sWS}:{sWS+3}], s{sT2} offen sc1", "ud")
    else:
        p(f"v_lshlrev_b32 v13, 4, v0")
        for i in range(4):
            p(f"buffer_load_dwordx4 v[{36+4*i}:{39+4*i}], v13, s[{sWS}:{sWS+3}], s{sT1} offen sc1", "ud")
            if i < 3: p(f"s_add_u32 s{sT1}, s{sT1}, 4096")
    return singles(p.l[1:])[1:] and [p.l[:1] + singles(p.l[1:])[0]] + singles(p.l[1:])[1:]
def u_write(role):
    p = P()
    sh, n, istr = (1, 2, 2048) if role == "A" else (2, 4, 1024)
    p(f"""v_bfe_u32 v13, v0, 5, 2
    v_and_b32 v14, 31, v0
    v_mul_u32_u24 v13, {USTR}, v13
    v_mov_b32 v16, 0
    v_mov_b32 v17, 0
    v_mov_b32 v18, 0
    v_mov_b32 v19, 0
    v_lshl_add_u32 v13, v14, 4, v13
    v_and_b32 v14, {n-1}, v0
    v_mul_u32_u24 v14, {USTR}, v14""")
    p(f"ds_write_b128 v13, v[16:19] offset:{UB}", "uw")
    p(f"v_lshrrev_b32 v13, {sh}, v0\nv_lshl_add_u32 v13, v13, 4, v14")
    p.wvm("ud")
    for i in range(n): p(f"ds_write_b128 v13, v[{36+4*i}:{39+4*i}] offset:{UB+512+i*istr}", "uw")
    return p
CACC = 64; CT = (160, 96); CU = (192, 128); vTB = (28, 24); vT0, vU0, vPW = 32, 33, 34
def tadr(k): return 4*[[]] if OPT.get("tu", 0) else [[I(f"v_add_u32 v{vTB[k&1]+u}, {-(1024*u + 512 + 128*k)}, v{vT0}")] for u in range(4)]
def trd(k):
    g = []
    for a in range(8):
        o = 0 if a & 1 else 128
        r = CT[k&1] + 4*a
        if OPT.get("tu", 0) == 1:
            g.append([I(f"ds_read_b128 v[{r}:{r+3}], v{vT0} offset:{4096 - 512*a - 128*k}", f"t{k}_{a}")]); continue
        if OPT.get("tu", 0) == 2:
            for h in range(2): g.append([I(f"ds_read_b64 v[{r+2*h}:{r+2*h+1}], v{vT0} offset:{4096 - 512*a - 128*k + 8*h}", f"t{k}_{a}")])
            continue
        g.append([I(f"ds_read2_b32 v[{r}:{r+1}], v{vTB[k&1]+a//2} offset0:{o} offset1:{o+1}", f"t{k}_{a}")])
        g.append([I(f"ds_read2_b32 v[{r+2}:{r+3}], v{vTB[k&1]+a//2} offset0:{o+2} offset1:{o+3}", f"t{k}_{a}")])
    return g
def urd(k, ms): return [[I(f"ds_read_b128 v[{CU[k&1]+4*m}:{CU[k&1]+4*m+3}], v{vU0} offset:{512*m+384-128*k}", f"u{k}_{m}")] for m in ms]
def conv_setup(rnd, RB=RB):
    p = P()
    p(f"""s_lshr_b32 s44, s{sWV}, 1
    s_mul_i32 s42, s44, 8320
    s_add_u32 s44, s44, {2*rnd}
    s_mul_i32 s43, s44, {USTR}
    s_and_b32 s44, s{sWV}, 1
    s_lshl_b32 s44, s44, 6
    s_sub_u32 s42, s42, s44
    s_sub_u32 s43, s43, s44
    s_add_u32 s42, s42, {RB + 4062 - (4096 if OPT.get('tu', 0) else 0)}
    s_add_u32 s43, s43, {UB + 96}
    v_and_b32 v35, 1, v{vN}
    v_xor_b32 v35, 1, v35
    v_mul_u32_u24 v35, 4158, v35
    v_lshl_add_u32 v35, v{vG}, 4, v35
    v_lshlrev_b32 v{vT0}, 1, v{vN}
    v_sub_u32 v35, v35, v{vT0}
    v_add_u32 v{vT0}, s42, v35
    v_lshl_add_u32 v35, v{vN}, 5, s43
    v_lshl_add_u32 v{vU0}, v{vG}, 4, v35
    s_lshr_b32 s44, s{sWV}, 1
    s_mul_i32 s42, s44, {CS}
    s_and_b32 s44, s{sWV}, 1
    s_lshl_b32 s44, s44, 13
    s_add_u32 s42, s42, s44
    s_add_u32 s42, s42, {PART}
    v_lshrrev_b32 v35, 1, v{vG}
    v_lshl_add_u32 v35, v35, 3, v{vN}
    v_and_b32 v35, 15, v35
    v_lshl_add_u32 v{vPW}, v{vG}, 8, s42
    v_lshl_add_u32 v{vPW}, v35, 4, v{vPW}""")
    return groups(p) + tadr(0) + trd(0)
def order(last):
    rem = [(a, m) for m in range(8) for a in range(8 - m)]; out = []
    while rem:
        D = OPT.get('cd', 2) if last else 3
        recent = [a + m for a, m in out[-(D-1):]]
        cnt = lambda j: sum(1 for a, m in rem if a + m == j)
        ok = [x for x in rem if sum(x) not in recent] or rem
        big = max(range(8), key=lambda j: (cnt(j), j))
        if D*cnt(big) - D + 1 >= len(rem) and any(sum(x) == big for x in ok): c = [x for x in ok if sum(x) == big][0]
        elif last and D == 2 and min(map(sum, rem)) in recent: c = max(ok, key=lambda x: (cnt(sum(x)), -x[1]))
        elif last: c = min(ok, key=lambda x: (sum(x), x[1]))
        else: c = ok[0]
        rem.remove(c); out.append(c)
    return out
def conv(fill, hooks, bar=True):
    p = P()
    if bar:
        p.wlg("uw"); p("s_barrier")
        for g in urd(0, range(8)): p.ext(g)
    nf = len(fill); fi = 0
    for k in range(4):
        if k in hooks: p.ext(hooks[k])
        m_ = []; seen = set(); od = order(k == 3); wr = {}
        for i, (a, m) in enumerate(od):
            pre = []
            for t in (f"t{k}_{a}", f"u{k}_{m}"):
                if t not in seen: seen.add(t); pre.append(I(f"@wlg {t}"))
            j = CACC + 4*(a + m)
            c = "0" if (k == 0 and ("a", a + m) not in seen) else f"v[{j}:{j+3}]"
            seen.add(("a", a + m))
            m_.append(pre + [I(f"v_mfma_f32_16x16x32_bf16 v[{j}:{j+3}], v[{CT[k&1]+4*a}:{CT[k&1]+4*a+3}], v[{CU[k&1]+4*m}:{CU[k&1]+4*m+3}], {c}")])
            if k == 3 and all(x + y != a + m for x, y in od[i+1:]): wr[a + m] = i
        rd = []
        if k < 3:
            ta = tadr(k+1)
            rd = [ta[0] + ta[1], ta[2] + ta[3]] + urd(k+1, [0]) + trd(k+1) + urd(k+1, range(1, 8))
        f = fill[fi: (nf*(k+1))//4]; fi = (nf*(k+1))//4
        start = OPT.get("cs0", 6) if k == 0 else 2
        out = []; ri = 0; gi = 0; lw = -9
        wq = sorted(wr, key=lambda j: wr[j])
        for i, mm in enumerate(m_):
            out += mm
            if i >= start + ri*(OPT.get("rsp", 15)/10 if OPT.get("tu", 0) == 1 else 1) and ri < len(rd): out += rd[ri]; ri += 1
            if wq and i >= wr[wq[0]] + 2 and i >= lw + 3:
                j = wq.pop(0); lw = i
                out.append(I(f"ds_write_b128 v{vPW}, v[{CACC+4*j}:{CACC+4*j+3}] offset:{1024*j}", "pw"))
            while gi < len(f) and gi * 36 <= i * len(f): out += f[gi]; gi += 1
        assert ri == len(rd)
        while gi < len(f): out += f[gi]; gi += 1
        p.ext(out)
    return p, wq
def hl(j, so=None):
    DH = OPT["DH"]
    return [[I(f"buffer_load_dwordx4 v[{HR+16*(j%DH)+4*s}:{HR+16*(j%DH)+4*s+3}], v{vH+s}, s[{sWS}:{sWS+3}], s{sHO+j if so is None else so} offen sc1", f"h{j}")] for s in range(4)]
def aout(rnd, wq, last=False, fill=[], nxt=[]):
    p = P(); pre_bar = None
    w = [I(f"ds_write_b128 v{vPW}, v[{CACC+4*j}:{CACC+4*j+3}] offset:{1024*j}", "pw") for j in wq]
    hq = list(fill)
    if last:
        p.wvm("ph")
        p(f"v_cmp_ne_u64 vcc, v[{vPOLL}:{vPOLL+1}], s[{sN}:{sN+1}]\ns_nop 3\ns_mov_b64 s[46:47], vcc\ns_cmp_eq_u64 s[46:47], 0")
        for j in range(OPT["DH"] - 1): p(f"s_cselect_b32 s{42+j}, s{sHO+j}, {OOB}")
        hq = sum((hl(j, 42 + j) for j in range(OPT["DH"] - 1)), [])
    n1 = OPT.get("hn", 4); n2 = OPT.get("hn2", 6)
    p.ext(w)
    for g in hq[:n1]: p.ext(g)
    hq2 = hq[n1+n2:]; hq = hq[n1:n1+n2]
    p0 = p; p = P()
    p(f"""s_lshl_b32 s{sC}, s{sWV}, 10
    s_add_u32 s{sC}, s{sC}, {PART}
    v_and_b32 v25, 1, v{vL}
    v_bfe_u32 v26, v{vL}, 1, 1
    v_lshrrev_b32 v27, 2, v{vL}
    v_lshl_add_u32 v27, v25, 3, v27
    v_and_b32 v27, 15, v27
    v_mul_u32_u24 v26, {CS}, v26
    v_lshl_add_u32 v26, v25, 9, v26
    v_lshl_add_u32 v26, v27, 4, v26
    v_add_u32 v26, s{sC}, v26
    v_lshrrev_b32 v27, 2, v0
    v_mul_u32_u24 v27, 20480, v27
    v_and_b32 v25, 3, v0
    v_lshl_add_u32 v27, v25, 4, v27
    s_add_u32 s{sC}, s{sPAIR}, {rnd}
    s_lshl_b32 s{sT1}, s{sC}, 6
    s_add_u32 s{sT1}, s{sT1}, {APR}
    s_add_u32 s{sT2}, s{sT1}, {64*20480}
    s_lshl_b32 s{sUS}, s{sC}, {FS}
    s_add_u32 s{sUS}, s{sUS}, {FLG_A}""")
    p0.ext(weave(p.l, hq, 1, 3) if hq else p.l); p = p0
    if pre_bar: p.ext(pre_bar)
    p("s_waitcnt lgkmcnt(0)\ns_barrier")
    for i in range(2):
        for h in range(2):
            for u in range(2): p(f"ds_read_b128 v[{96+16*i+8*h+4*u}:{99+16*i+8*h+4*u}], v26 offset:{4096*i+8192*h+256*u}", f"pr{i}")
    for g in hq2: p.ext(g)
    for i in range(2):
        p.wlg(f"pr{i}")
        if i == 1:
            for g in nxt: p.ext(g)
        b = 96 + 16*i
        for u in range(4): p(f"v_pk_add_f32 v[{b+2*u}:{b+2*u+1}], v[{b+2*u}:{b+2*u+1}], v[{b+8+2*u}:{b+9+2*u}]")
        for u in range(4): p(f"v_cvt_pk_bf16_f32 v{128+4*i+u}, v{b+2*u}, v{b+2*u+1}")
        p(f"buffer_store_dwordx4 v[{128+4*i}:{131+4*i}], v27, s[{sWS}:{sWS+3}], s{sT1 if i == 0 else sT2} offen sc1", "ast")
    return p
def hflag_hook(role, split=False):
    p = P()
    p(f"s_lshl_b32 s{sT1}, s{sRB}, {FS+4}\ns_lshl_b32 s{sC}, s{sCT}, {FS}\ns_add_u32 s{sT1}, s{sT1}, s{sC}\ns_add_u32 s{sT1}, s{sT1}, {FLG_H + (0 if role == 'A' else 12 << FS)}")
    if role == "C": p(f"s_lshl_b32 s{sT1}, s{sRB}, {FS+4}\ns_add_u32 s{sT1}, s{sT1}, {FLG_H + (15 << FS)}")
    p.wvm("hst")
    if split:
        q = P(); flag_store(q, sT1); return p, q
    p("s_barrier"); flag_store(p, sT1)
    return p
def tail_fill():
    q = P()
    q(f"s_mul_i32 s{sSPIN}, s{sC2}, 160\nv_lshl_add_u32 v12, v{vG}, 3, s{sSPIN}")
    g0 = [q.l]
    for db in range(5): g0.append([I(f"global_load_dwordx2 v[{46+2*db}:{47+2*db}], v12, s[{pB2}:{pB2+1}] offset:{32*db}", "b2")])
    q = P()
    q(f"""s_lshr_b32 s{sSPIN}, s{sRT}, 1
    s_lshl_b32 s{sSPIN}, s{sSPIN}, {FS+4}
    s_add_u32 s{sSPIN}, s{sSPIN}, {FLG_H}
    v_lshl_add_u32 v13, v{vN}, {FS}, s{sSPIN}""")
    poll_issue(q, vPOLL, 13, "ph")
    return g0, [q.l]
G2ACC = 64; HR = 144
def gemm2():
    p = P(); DH = OPT["DH"]; MG = OPT.get("MG", 3)
    ls, lb = lab("slow"), lab("back")
    p(f"s_cmp_lg_u64 s[46:47], 0\ns_cbranch_scc1 {ls}\n{lb}:")
    SLOW.append(f"""{ls}:
s_mov_b32 s{sSPIN}, 0
{ls}l:
buffer_load_dwordx2 v[{vPOLL}:{vPOLL+1}], v13, s[{sWS}:{sWS+3}], 0 offen sc1
s_add_u32 s{sSPIN}, s{sSPIN}, 1
s_cmp_ge_u32 s{sSPIN}, 0x8000
s_cbranch_scc1 {ls}x
s_waitcnt vmcnt(0)
v_cmp_ne_u64 vcc, v[{vPOLL}:{vPOLL+1}], s[{sN}:{sN+1}]
s_cbranch_vccnz {ls}l
{ls}x:
s_waitcnt vmcnt(0)
""" + "".join(g[0].t + "\n" for j in range(DH - 1) for g in hl(j)) + f"""v_mov_b32 v12, {OOB}
buffer_load_dword v229, v12, s[{sWS}:{sWS+3}], 0 offen
buffer_load_dword v229, v12, s[{sWS}:{sWS+3}], 0 offen
s_branch {lb}
""")
    ts(p, 10)
    p.wvm("b2"); unpack(p, 36, 46, 5)
    srd(p, sT, pOut, 2048*1280)
    p(f"v_cmp_eq_u32 vcc, 192, v0\nv_mov_b32 v15, {OOB}\nv_cndmask_b32 v15, v15, 0, vcc".replace("192, v0", "v0, v0") if 0 else f"s_mov_b32 s{sC}, 192\nv_cmp_ne_u32 vcc, s{sC}, v0\nv_mov_b32 v15, {OOB}\nv_cndmask_b32 v15, 0, v15, vcc")
    AL = HR + 16*(14 % DH)
    def mf(j, s):
        m = []
        for db in range(5):
            a = G2ACC + 20*s + 4*db
            c = f"v[{a}:{a+3}]" if j else (f"v[{36+4*db}:{39+4*db}]" if s == 0 else "0")
            m.append(I(f"v_mfma_f32_16x16x32_bf16 v[{a}:{a+3}], {w2reg(5*j+db)}, v[{HR+16*(j%DH)+4*s}:{HR+16*(j%DH)+4*s+3}], {c}"))
        return m
    JF, JP, JA = OPT.get("JF", DH - 1), OPT.get("JP", 8), 14 - MG - 1
    def acheck():
        q = P()
        poll_check(q, vPOLL, 13, "pa")
        q(f"""s_lshl_b32 s{sC}, s{sRT}, 2
        s_add_u32 s{sC}, s{sC}, s{sWV}
        s_mul_i32 s{sT1}, s{sC}, 20480
        s_lshl_b32 s{sT2}, s{sC}, 6
        s_mul_i32 s{sC}, s{sC2}, 2560
        s_add_u32 s{sT1}, s{sT1}, s{sC}
        s_add_u32 s{sT1}, s{sT1}, {APR}
        s_add_u32 s{sT2}, s{sT2}, {GBUF}
        v_cmp_gt_u32 vcc, 32, v{vL}
        v_mov_b32 v12, {OOB}
        v_lshlrev_b32 v13, 2, v{vN}
        v_cndmask_b32 v12, v12, v{vW2a}, vcc""")
        q(f"""buffer_load_dwordx4 v[{AL}:{AL+3}], v{vW2a}, s[{sWS}:{sWS+3}], s{sT1} offen sc1
        buffer_load_dwordx4 v[{AL+4}:{AL+7}], v{vW2a}, s[{sWS}:{sWS+3}], s{sT1} offen offset:1024 sc1
        buffer_load_dwordx4 v[{AL+8}:{AL+11}], v12, s[{sWS}:{sWS+3}], s{sT1} offen offset:2048 sc1
        buffer_load_dword v{vGv}, v13, s[{sWS}:{sWS+3}], s{sT2} offen sc1""", "ad")
        q(f"""s_lshl_b32 s{sC}, s{sRT}, 2
        s_add_u32 s{sC}, s{sC}, s{sWV}
        s_mul_i32 s{sT1}, s{sC}, 20480
        s_mul_i32 s{sC}, s{sC2}, 160
        s_add_u32 s{sT1}, s{sT1}, s{sC}""")
        return q
    for j in range(14 - MG):
        p.wvm(f"w2_{j}"); p.wvm(f"h{j}")
        if OPT.get("g2ts") and j in (0, 1, 2, 3, 4, 5, 7, 9): ts(p, {0:1, 1:2, 2:3, 3:4, 4:5, 5:6, 7:7, 9:8}[j])
        m = sum((mf(j, s) for s in range(4)), [])
        f = hl(j + DH - 1) if j + DH - 1 < 14 else []
        body = weave(m, f, 1, 5)
        ex = []
        if j == JF:
            q = P(); q.wvm("ast"); q("s_barrier")
            q(f"buffer_store_dwordx2 v[{vNON}:{vNON+1}], v15, s[{sWS}:{sWS+3}], s{sUS} offen sc1", "flag"); ex = [q.l]
            p.ext(q.l); ex = []
        if j == JP:
            q = P()
            q(f"""s_mul_i32 s{sC}, s{sC2}, {40 << FS}
            s_add_u32 s{sC}, s{sC}, {FLG_A}
            v_min_u32 v13, 39, v{vL}
            v_lshl_add_u32 v13, v13, {FS}, s{sC}""")
            poll_issue(q, vPOLL, 13, "pa"); ex = [q.l]
        if j == 1:
            q = P()
            for s in range(1, 4):
                q(f"s_xor_b32 s{sC}, s{sWV}, {s}\ns_mul_i32 s{sC}, s{sC}, 15360\ns_add_u32 s{sC}, s{sC}, {RED + (s-1)*5120}\nv_add_u32 v{24+s}, s{sC}, v{vW2a}")
            q(f"""s_mul_i32 s{sC}, s{sWV}, 15360
            s_add_u32 s{sC}, s{sC}, {RED}
            v_add_u32 v24, s{sC}, v{vW2a}
            s_mul_i32 s{sC}, s{sWV}, 3072
            s_add_u32 s{sC}, s{sC}, {AST}
            v_add_u32 v28, s{sC}, v{vW2a}
            v_lshl_add_u32 v29, v{vL}, 3, s{sC}
            v_mul_u32_u24 v30, 176, v{vN}
            v_lshl_add_u32 v30, v{vG}, 3, v30
            v_add_u32 v30, s{sC}, v30""")
            body = weave(body, groups(q), 0, 0.7)
        if j == 2:
            q = P()
            for i in range(3):
                q(f"""v_add_u32 v12, {64*i}, v{vL}
                v_mul_u32_u24 v13, 6554, v12
                v_lshrrev_b32 v13, 16, v13
                v_mul_u32_u24 v14, 10, v13
                v_sub_u32 v12, v12, v14
                v_mul_u32_u24 v14, 176, v13
                v_lshl_add_u32 v14, v12, 4, v14
                v_add_u32 v{16+i}, s{sC}, v14
                v_mul_u32_u24 v14, 1280, v13
                v_lshl_add_u32 v{20+i}, v12, 4, v14""")
            q(f"""v_cmp_gt_u32 vcc, 32, v{vL}
            v_mov_b32 v12, {OOB}
            v_cndmask_b32 v22, v12, v22, vcc""")
            body = weave(body, groups(q), 0, 0.6)
        body = weave(body, ex, 12, 1)
        p.ext(body)
    for j in range(14 - MG, 14): p.wvm(f"w2_{j}")
    if OPT.get("g2ts"): ts(p, 9)
    first = True
    wr = []
    for s in (1, 2, 3, 0):
        m = []
        for j in range(14 - MG, 14):
            mm = mf(j, s)
            if first: mm = [I(f"@wvm h{j}")] + mm
            m += mm
        if first: m = weave(m, groups(acheck()), OPT.get("JC", 2), 0.5)
        first = False
        m = weave(m, wr, 2, OPT.get("wst", 3))
        p.ext(m)
        wr = [[I(f"ds_write_b128 v{24+s}, v[{G2ACC+20*s+4*db}:{G2ACC+20*s+4*db+3}] offset:{db*1024}", "rw")] for db in range(5)]
    ts(p, 11)
    p.wvm("ad")
    for i in range(3): p(f"ds_write_b128 v28, v[{AL+4*i}:{AL+4*i+3}] offset:{i*1024}", "rw")
    p("s_waitcnt lgkmcnt(0)\ns_barrier")
    ts(p, 12)
    for db in range(5):
        p(f"ds_read_b64_tr_b16 v[{36+2*db}:{37+2*db}], v29 offset:{db*512}", f"r{db}")
        for s in range(1, 4):
            a = G2ACC + 20*s + 4*db
            p(f"ds_read_b128 v[{a}:{a+3}], v24 offset:{(s-1)*5120+db*1024}", f"r{db}")
    for db in range(5):
        p.wlg(f"r{db}")
        a = G2ACC + 4*db
        for s in range(1, 4):
            for u in (0, 2): p(f"v_pk_add_f32 v[{a+u}:{a+u+1}], v[{a+u}:{a+u+1}], v[{a+20*s+u}:{a+20*s+u+1}]")
        unpack(p, 48, 36 + 2*db, 1)
        for u in (0, 2): p(f"v_pk_add_f32 v[{48+u}:{49+u}], v[{48+u}:{49+u}], v[{a+u}:{a+u+1}] neg_lo:[0,1] neg_hi:[0,1]")
        for u in (0, 2): p(f"v_pk_fma_f32 v[{a+u}:{a+u+1}], v[{48+u}:{49+u}], v[{vGv}:{vGv+1}], v[{a+u}:{a+u+1}] op_sel_hi:[1,0,1]")
        p(f"v_cvt_pk_bf16_f32 v{52+2*(db&1)}, v{a}, v{a+1}\nv_cvt_pk_bf16_f32 v{53+2*(db&1)}, v{a+2}, v{a+3}")
        p(f"ds_write_b64 v30, v[{52+2*(db&1)}:{53+2*(db&1)}] offset:{32*db}", "ow")
    for i in range(3): p(f"ds_read_b128 v[{96+4*i}:{99+4*i}], v{16+i}", f"o{i}")
    for i in range(3):
        p.wlg(f"o{i}")
        p(f"buffer_store_dwordx4 v[{96+4*i}:{99+4*i}], v{20+i}, s[{sT}:{sT+3}], s{sT1} offen " + OPT.get("ost", "").replace("_", " "), "out")
    finish(p)
    return p
def finish(p):
    if OPT["ts"]:
        p("s_waitcnt vmcnt(0)"); ts(p, 13)
        l = lab("tse")
        p(f"""s_cmp_lg_u32 s{sWV}, 0
        s_cbranch_scc1 {l}
        s_add_u32 s{pWs}, s{pWs}, {TS_OFF}
        s_addc_u32 s{pWs+1}, s{pWs+1}, 0
        s_lshl_b32 s{sC}, s2, 7
        v_lshl_add_u32 v12, v{vL}, 3, s{sC}
        s_mov_b64 exec, 0xffff
        global_store_dwordx2 v12, v[{vTS}:{vTS+1}], s[{pWs}:{pWs+1}]
        {l}:""")
    p("s_endpgm")
def dbg_dump_R(p):
    p(f"s_waitcnt vmcnt(0) lgkmcnt(0)\ns_barrier\ns_lshl_b32 s{sC}, s2, 15\ns_add_u32 s{sC}, s{sC}, {DBG}\nv_lshlrev_b32 v12, 4, v0")
    for i in range(8):
        p(f"ds_read_b128 v[64:67], v12 offset:{i*4096}\ns_waitcnt lgkmcnt(0)\nbuffer_store_dwordx4 v[64:67], v12, s[{sWS}:{sWS+3}], s{sC} offen\ns_add_u32 s{sC}, s{sC}, 4096\ns_waitcnt vmcnt(0)")
    p("s_endpgm")

def role_head(role):
    p = P()
    if role != "A": p(f"L_{role}:")
    prefetch_code(p, role)
    x, sl, pp, q = sA, sB, sOX, sOW
    if role == "A" and OPT.get("map", 1):
        p(f"""s_lshr_b32 s{sCT}, s{sl}, 1
        s_and_b32 s{sC}, s{sl}, 1
        s_lshl_b32 s{sRB}, s{x}, 1
        s_add_u32 s{sRB}, s{sRB}, s{sC}
        s_mul_i32 s{sPAIR}, s{x}, 24
        s_add_u32 s{sPAIR}, s{sPAIR}, s{sl}
        s_mul_i32 s{sC}, s{sC}, {OPT.get("ra", 5)}
        s_mul_i32 s{sCH}, s{x}, {OPT.get("rc", 3)}
        s_add_u32 s{sC}, s{sC}, s{sCH}
        s_add_u32 s{sC}, s{sC}, s{sCT}""")
        mod10(p, sCH, sC, sSPIN)
    elif role == "B" and OPT.get("map", 1):
        p(f"""s_sub_u32 s{sC}, s{sl}, 24
        s_lshr_b32 s{sCT}, s{sC}, 1
        s_and_b32 s{sC}, s{sC}, 1
        s_lshl_b32 s{sRB}, s{x}, 1
        s_add_u32 s{sRB}, s{sRB}, s{sC}
        s_mul_i32 s{sPAIR}, s{x}, 6
        s_add_u32 s{sPAIR}, s{sPAIR}, s{sl}
        s_lshl_b32 s{sPAIR}, s{sPAIR}, 1
        s_add_u32 s{sPAIR}, s{sPAIR}, {192-48}
        s_mul_i32 s{sC}, s{sC}, {OPT.get("ra", 5)}
        s_mul_i32 s{sCH}, s{x}, {OPT.get("rc", 3)}
        s_add_u32 s{sC}, s{sC}, s{sCH}
        s_mul_i32 s{sCH}, s{sCT}, 3
        s_add_u32 s{sC}, s{sC}, s{sCH}""")
        mod10(p, sCH, sC, sSPIN)
    elif role == "A":
        p(f"""s_mul_i32 s{sCT}, s{q}, 6
        s_lshr_b32 s{sC}, s{sl}, 2
        s_add_u32 s{sCT}, s{sCT}, s{sC}
        s_and_b32 s{sC}, s{sl}, 3
        s_lshl_b32 s{sRB}, s{pp}, 2
        s_add_u32 s{sRB}, s{sRB}, s{sC}
        s_mul_i32 s{sPAIR}, s{x}, 24
        s_add_u32 s{sPAIR}, s{sPAIR}, s{sl}
        s_mul_i32 s{sC}, s{sRB}, 3
        s_add_u32 s{sC}, s{sC}, s{sCT}""")
        mod10(p, sCH, sC, sSPIN)
    elif role == "B":
        p(f"""s_mul_i32 s{sC}, s{q}, 6
        s_add_u32 s{sC}, s{sC}, s{sl}
        s_sub_u32 s{sC}, s{sC}, 24
        s_lshr_b32 s{sCT}, s{sC}, 2
        s_and_b32 s{sC}, s{sC}, 3
        s_lshl_b32 s{sRB}, s{pp}, 2
        s_add_u32 s{sRB}, s{sRB}, s{sC}
        s_mul_i32 s{sPAIR}, s{x}, 6
        s_add_u32 s{sPAIR}, s{sPAIR}, s{sl}
        s_lshl_b32 s{sPAIR}, s{sPAIR}, 1
        s_add_u32 s{sPAIR}, s{sPAIR}, {192-48}
        s_add_u32 s{sC}, s{sRB}, s{sCT}
        s_mul_i32 s{sC}, s{sC}, 3
        s_add_u32 s{sC}, s{sC}, 6""")
        mod10(p, sCH, sC, sSPIN)
    else:
        p(f"""s_lshl_b32 s{sCT}, s{x}, 1
        s_add_u32 s{sCT}, s{sCT}, s{sl}
        s_sub_u32 s{sCT}, s{sCT}, 30
        s_lshl_b32 s{sPAIR}, s{sCT}, 1
        s_mov_b32 s{sRB}, s{sCT}
        s_add_u32 s{sPAIR}, s{sPAIR}, 288""")
    params_issue(p, role)
    if OPT.get('stop') == 0: p('s_waitcnt lgkmcnt(0)'); finish(p)
    pre = post = None
    kdt = OPT.get("kdt", 90)
    if role == "C":
        p.ext(c_setup())
        p(f"s_mov_b32 s{sSL}, s{sB}")
        p.ext(dma_c(0))
        nonce_issue(p)
        fill = sum((singles(dma_c(cc)) for cc in range(1, 8)), [])
        pre = P(); pre.wvm("gw"); kdt = OPT.get("kdtC", 48)
        p.ext(common_v())
    else:
        nw = 4 if role == "A" else 2
        p.ext(g1_setup(role))
        p(f"s_mov_b32 s{sKA}, s{sCH}\ns_mov_b32 s{sSL}, s{sB}")
        d0 = dma_x(0)
        for i in d0:
            if i.cls == "vmem": i.tag = "x0"
        p.ext(d0)
        if role == "A":
            p.ext(rl_setup())
            if not OPT.get("rlp", 1): p.ext(rl_dma())
            p.ext(ut_setup())
        nonce_issue(p)
        bi = g1_bias_issue(role).l; nb = len(bi) - nw
        p.ext(bi[:nb])
        p.ext(common_v())
        fill = singles(dma_w(0, nw)) + [bi[nb:]] + sum((singles(g) for g in [dma_x(1), dma_w(1, nw), dma_x(2), dma_w(2, nw)]), [])
        kdt = OPT.get("kdtB", 70)
        if role == "A":
            r = rl_xfer(); u = ut_xfer(); k0 = OPT.get("k0", 5); k1 = OPT.get("k1", 8)
            kdt = OPT.get("kdtA", 42)
            rd = singles(rl_dma()) if OPT.get("rlp", 1) else []
            fill = fill[:4] + rd + fill[4:k0] + [[I("@wvm x0")] + u[0]] + u[1:] + fill[k0:len(fill)-k1] + [r[0]] + r[1:] + fill[len(fill)-k1:]
            pre = P(); nonce_check(pre); pre.wvm("uts")
            post = P(); flag_store(post, sT2)
            if OPT.get("pfs", -1) == -1: pre.wvm("pst"); pre.ext(pflag().l)
    for g in g2_offsets(): p.ext(g)
    p("s_waitcnt lgkmcnt(0)")
    if role == "A":
        p(f"""s_lshl_b32 s{sGC}, s{sKA}, {FS+4}
        s_lshl_b32 s{sUS}, s{sKA}, 18
        s_lshl_b32 s{sC}, s{sRB}, 10
        s_add_u32 s{sUS}, s{sUS}, s{sC}
        s_add_u32 s{sUS}, s{sUS}, {UT}
        s_lshl_b32 s{sC}, s{sRB}, {FS}
        s_add_u32 s{sT2}, s{sGC}, s{sC}
        s_add_u32 s{sT2}, s{sT2}, {FLG_U}
        s_cmp_lt_u32 s{sCT}, 10
        s_cselect_b32 s{sUS}, s{sUS}, {OOB}
        s_cselect_b32 s{sT2}, s{sT2}, {OOB}""")
    ts(p, 1)
    if OPT.get("x2"):
        l = lab("lp")
        for g in fill: p.ext(g)
        p("s_waitcnt vmcnt(0) lgkmcnt(0)\ns_mov_b32 s41, 0"); ts(p, 2); p(f"{l}:")
        p.ext(kgen(vP0, 0, 54, [], 100, kdt, None, None))
        p(f"s_waitcnt lgkmcnt(0)\ns_barrier\ns_memtime s[{sA}:{sA+1}]\ns_add_u32 s41, s41, 1\ns_add_u32 m0, s41, 2\ns_waitcnt lgkmcnt(0)\nv_writelane_b32 v{vTS}, s{sA}, m0\nv_writelane_b32 v{vTS+1}, s{sA+1}, m0\ns_cmp_lt_u32 s41, 3\ns_cbranch_scc1 {l}")
        finish(p)
    p.ext(kgen(vP0, 0, 54, fill, 100, kdt, pre, post))
    if OPT["dbg"] == "R": dbg_dump_R(p)
    if role != "A": nonce_check(p)
    ts(p, 2)
    if OPT.get('stop') == 2: finish(p)
    return p
def build():
    SLOW.clear()
    out = []
    st0 = St(); e = entry(); out += resolve(e.l, st0)
    b2g, hpoll = None, None
    for role in "ABC":
        st = st0.copy()
        p = role_head(role)
        W = w2loads(0, 70)
        up = up_addr()
        if role == "A":
            n1, n2 = OPT.get("n1", 26), OPT.get("n2", 16)
            hu = OPT.get("hu", 19)
            sched = {9: up[1:], 13: p_check() + W[:2]}
            for k in range(6): sched[14 + k] = W[2 + (n1-2)*k//6: 2 + (n1-2)*(k+1)//6]
            sched[hu - 4] = up[:1] + sched.get(hu - 4, []); sched[hu] = u_issue(role) + sched[hu]
            p.ext(cweave(g1_addr(role).l, singles(dma_x(3)), 0, 50))
            p.ext(gemm1("A", sched, {OPT.get("pfs", -1): ("pst", pflag())})); ts(p, 3)
            if OPT.get('stop') == 3: finish(p)
            p("s_nop 7")
            p.ext(gelu(role, W[n1:n1+n2], groups(u_write(role)) + conv_setup(0))); ts(p, 4)
            W = W[n1+n2:]
            hooks = {OPT.get("hk", 1): hflag_hook(role)}
        else:
            hs = []
            if role == "B":
                p.ext(cweave(g1_addr(role).l, singles(dma_x(3)), 0, 40)); p.ext(gemm1("B", {})); ts(p, 3)
                p("s_nop 7")
                p.ext(gelu(role, [], [], hs)); ts(p, 4)
            else:
                p.ext(cgate()); p("s_barrier"); ts(p, 3)
            n3, n4, n5 = OPT.get("n3", 28), OPT.get("n4", 6), OPT.get("n5", 6)
            pre, post = hflag_hook(role, True) if role == "C" else (None, P())
            gap = [[] for _ in range(OPT.get("ug" + role, 2 if role == "B" else 8))]
            n6 = OPT.get("n6", 6)
            for g in W[n4:n4+n6]: post.ext(g)
            tq = P()
            if OPT.get("kts"): ts(tq, 1)
            tq2 = P()
            if OPT.get("kts"): ts(tq2, 2)
            p.ext(kgen(vP1, 1, 55, gap + up + OPT.get("ug2", 5)*[[]] + [tq.l] + u_issue(role) + p_check() + [tq2.l] + hs + W[:n4], 100, 64, pre, post, 1, STG2, RB2)); ts(p, 7)
            W = W[n4+n6:]
            for g in conv_setup(0): p.ext(g)
            p.ext(u_write(role))
            cv, wq = conv(W[:n3], {2: hflag_hook(role)} if role == 'B' else {})
            p.ext(cv); ts(p, 5); p.ext(aout(0, wq, fill=W[n3:n3+n5], nxt=conv_setup(1, RB2) + urd(0, range(8)))); ts(p, 6)
            q = P(); q.wvm("ast"); q("s_barrier"); flag_store(q, sUS)
            hooks = {OPT.get("hk1", 2): q}; W = W[n3+n5:]
        b2g, hpoll = tail_fill()
        hp = len(W) - OPT.get("hp", 6)
        cv, wq = conv(b2g + W[:hp] + hpoll + W[hp:], hooks, role == "A")
        p.ext(cv); ts(p, 8)
        p.ext(aout(0 if role == "A" else 1, wq, last=True))
        if not OPT.get("g2ts"): ts(p, 9)
        if OPT.get('stop') == 9: finish(p)
        p.ext(gemm2())
        out += resolve(p.l, st)
        out += P()("".join(SLOW) + f"L_{role}_end:").l
        SLOW.clear()
    ref = open("cdna_kernels/" + NAME + ".s.ref").read().split("\n")
    hdr = []
    for l in ref:
        if l.startswith("; @launch"): break
        hdr.append(l)
    K = NAME + "_kernel"
    hdr += [f"; @launch grid=(256,1,1) block=(256,1,1) lds={LDS}", '.amdgcn_target "amdgcn-amd-amdhsa--gfx950"', ".text", f".globl {K}", ".p2align 8", f".type {K},@function", f"{K}:"]
    wrap = lambda o: "\n".join(hdr) + "\n" + text(o) + tail
    tail = f"""L_end:
s_endpgm
.section .rodata,"a"
.p2align 6
.amdhsa_kernel {K}
  .amdhsa_next_free_vgpr 512
  .amdhsa_next_free_sgpr 102
  .amdhsa_accum_offset 256
  .amdhsa_group_segment_fixed_size 0
  .amdhsa_kernarg_size 144
  .amdhsa_user_sgpr_count 2
  .amdhsa_user_sgpr_kernarg_segment_ptr 1
  .amdhsa_system_sgpr_workgroup_id_x 1
.end_amdhsa_kernel
"""
    if OPT.get("al", 0): out = align(out, wrap, 3, OPT.get("al", 0))
    return wrap(out)
if __name__ == "__main__":
    fn = sys.argv[1]
    for a in sys.argv[2:]:
        k, v = a.split("=")
        OPT[k] = int(v) if v.lstrip("-").isdigit() else v
    open(fn, "w").write(build())
```

```python
from gen2 import *
import sys
from align import align
vPOLL = 14
def up_addr():
    p = P()
    p(f"""s_lshr_b32 s{sC}, s{sPAIR}, 5
    s_lshl_b32 s{sC}, s{sC}, {FS+4}
    s_add_u32 s{sC}, s{sC}, {FLG_U}
    v_lshl_add_u32 v13, v{vN}, {FS}, s{sC}""")
    poll_issue(p, vPOLL, 13, "pu")
    q = P()
    q(f"""s_mul_i32 s{sC}, s{sWV}, 14
    s_cmp_eq_u32 s{sWV}, 3
    s_subb_u32 s{sC}, s{sC}, 0
    s_lshr_b32 s{sSPIN}, s{sWV}, 1
    s_sub_u32 s{sSPIN}, 13, s{sSPIN}
    v_min_u32 v12, s{sSPIN}, v{vL}
    s_lshl_b32 s{sSPIN}, s{sC2}, 6
    s_add_u32 s{sC}, s{sC}, s{sSPIN}
    s_lshl_b32 s{sC}, s{sC}, {FS}
    s_add_u32 s{sC}, s{sC}, {FLG_P}
    v_lshl_add_u32 v12, v12, {FS}, s{sC}""")
    poll_issue(q, 226, 12, "pp")
    return [p.l, q.l]
def pflag():
    p = P()
    p(f"v_cmp_ne_u32 vcc, 0, v{vL}\nv_mov_b32 v12, {OOB}\nv_cndmask_b32 v12, 0, v12, vcc")
    p(f"buffer_store_dwordx2 v[{vNON}:{vNON+1}], v12, s[{sWS}:{sWS+3}], s{sPF} offen sc1", "flag")
    return p
def p_check():
    p = P(); poll_check(p, 226, 12, "pp"); return [p.l]
def u_issue(role):
    p = P()
    poll_check(p, vPOLL, 13, "pu")
    p(f"s_lshr_b32 s{sT1}, s{sPAIR}, 1\ns_lshl_b32 s{sT1}, s{sT1}, 14\ns_add_u32 s{sT1}, s{sT1}, {UT}")
    if role == "A":
        p(f"""s_and_b32 s{sC}, s{sPAIR}, 1
        s_lshl_b32 s{sC}, s{sC}, 5
        s_add_u32 s{sT1}, s{sT1}, s{sC}
        v_lshrrev_b32 v13, 1, v0
        v_and_b32 v14, 1, v0
        v_lshlrev_b32 v13, 6, v13
        v_lshl_add_u32 v13, v14, 4, v13
        s_add_u32 s{sT2}, s{sT1}, 8192""")
        p(f"buffer_load_dwordx4 v[36:39], v13, s[{sWS}:{sWS+3}], s{sT1} offen sc1\nbuffer_load_dwordx4 v[40:43], v13, s[{sWS}:{sWS+3}], s{sT2} offen sc1", "ud")
    else:
        p(f"v_lshlrev_b32 v13, 4, v0")
        for i in range(4):
            p(f"buffer_load_dwordx4 v[{36+4*i}:{39+4*i}], v13, s[{sWS}:{sWS+3}], s{sT1} offen sc1", "ud")
            if i < 3: p(f"s_add_u32 s{sT1}, s{sT1}, 4096")
    return singles(p.l[1:])[1:] and [p.l[:1] + singles(p.l[1:])[0]] + singles(p.l[1:])[1:]
def u_write(role):
    p = P()
    sh, n, istr = (1, 2, 2048) if role == "A" else (2, 4, 1024)
    p(f"""v_bfe_u32 v13, v0, 5, 2
    v_and_b32 v14, 31, v0
    v_mul_u32_u24 v13, {USTR}, v13
    v_mov_b32 v16, 0
    v_mov_b32 v17, 0
    v_mov_b32 v18, 0
    v_mov_b32 v19, 0
    v_lshl_add_u32 v13, v14, 4, v13
    v_and_b32 v14, {n-1}, v0
    v_mul_u32_u24 v14, {USTR}, v14""")
    p(f"ds_write_b128 v13, v[16:19] offset:{UB}", "uw")
    p(f"v_lshrrev_b32 v13, {sh}, v0\nv_lshl_add_u32 v13, v13, 4, v14")
    p.wvm("ud")
    for i in range(n): p(f"ds_write_b128 v13, v[{36+4*i}:{39+4*i}] offset:{UB+512+i*istr}", "uw")
    return p
CACC = 64; CT = (160, 96); CU = (192, 128); vTB = (28, 24); vT0, vU0, vPW = 32, 33, 34
def tadr(k): return 4*[[]] if OPT.get("tu", 0) else [[I(f"v_add_u32 v{vTB[k&1]+u}, {-(1024*u + 512 + 128*k)}, v{vT0}")] for u in range(4)]
def trd(k):
    g = []
    for a in range(8):
        o = 0 if a & 1 else 128
        r = CT[k&1] + 4*a
        if OPT.get("tu", 0) == 1:
            g.append([I(f"ds_read_b128 v[{r}:{r+3}], v{vT0} offset:{4096 - 512*a - 128*k}", f"t{k}_{a}")]); continue
        if OPT.get("tu", 0) == 2:
            for h in range(2): g.append([I(f"ds_read_b64 v[{r+2*h}:{r+2*h+1}], v{vT0} offset:{4096 - 512*a - 128*k + 8*h}", f"t{k}_{a}")])
            continue
        g.append([I(f"ds_read2_b32 v[{r}:{r+1}], v{vTB[k&1]+a//2} offset0:{o} offset1:{o+1}", f"t{k}_{a}")])
        g.append([I(f"ds_read2_b32 v[{r+2}:{r+3}], v{vTB[k&1]+a//2} offset0:{o+2} offset1:{o+3}", f"t{k}_{a}")])
    return g
def urd(k, ms): return [[I(f"ds_read_b128 v[{CU[k&1]+4*m}:{CU[k&1]+4*m+3}], v{vU0} offset:{512*m+384-128*k}", f"u{k}_{m}")] for m in ms]
def conv_setup(rnd, RB=RB, inl=False):
    p = P()
    p(f"""s_lshr_b32 s44, s{sWV}, 1
    s_mul_i32 s42, s44, 8320
    s_add_u32 s44, s44, {2*rnd}
    s_mul_i32 s43, s44, {USTR}
    s_and_b32 s44, s{sWV}, 1
    s_lshl_b32 s44, s44, 6
    s_sub_u32 s42, s42, s44
    s_sub_u32 s43, s43, s44
    s_add_u32 s42, s42, {RB + 4062 - (4096 if OPT.get('tu', 0) else 0)}
    s_add_u32 s43, s43, {UB + 96}
    v_and_b32 v35, 1, v{vN}
    v_xor_b32 v35, 1, v35
    v_mul_u32_u24 v35, 4158, v35
    v_lshl_add_u32 v35, v{vG}, 4, v35
    v_lshlrev_b32 v{vT0}, 1, v{vN}
    v_sub_u32 v35, v35, v{vT0}
    v_add_u32 v{vT0}, s42, v35
    v_lshl_add_u32 v35, v{vN}, 5, s43
    v_lshl_add_u32 v{vU0}, v{vG}, 4, v35
    s_lshr_b32 s44, s{sWV}, 1
    s_mul_i32 s42, s44, {CS}
    s_and_b32 s44, s{sWV}, 1
    s_lshl_b32 s44, s44, 13
    s_add_u32 s42, s42, s44
    s_add_u32 s42, s42, {PART}
    v_lshrrev_b32 v35, 1, v{vG}
    v_lshl_add_u32 v35, v35, 3, v{vN}
    v_and_b32 v35, 15, v35
    v_lshl_add_u32 v{vPW}, v{vG}, 8, s42
    v_lshl_add_u32 v{vPW}, v35, 4, v{vPW}""")
    if inl:
        l = p.l[:19]; ta = tadr(0)
        return [l[i:i+3] for i in range(0, 19, 3)] + [ta[0] + ta[1], ta[2] + ta[3]] + urd(0, [0]) + trd(0) + urd(0, range(1, 8))
    return groups(p) + tadr(0) + trd(0)
def order(last):
    rem = [(a, m) for m in range(8) for a in range(8 - m)]; out = []
    while rem:
        D = OPT.get('cd', 2) if last else 3
        recent = [a + m for a, m in out[-(D-1):]]
        cnt = lambda j: sum(1 for a, m in rem if a + m == j)
        ok = [x for x in rem if sum(x) not in recent] or rem
        big = max(range(8), key=lambda j: (cnt(j), j))
        if D*cnt(big) - D + 1 >= len(rem) and any(sum(x) == big for x in ok): c = [x for x in ok if sum(x) == big][0]
        elif last and D == 2 and min(map(sum, rem)) in recent: c = max(ok, key=lambda x: (cnt(sum(x)), -x[1]))
        elif last: c = min(ok, key=lambda x: (sum(x), x[1]))
        else: c = ok[0]
        rem.remove(c); out.append(c)
    return out
def conv(fill, hooks, bar=True, nxt=[]):
    p = P()
    if bar:
        p.wlg("uw"); p("s_barrier")
        for g in urd(0, range(8)): p.ext(g)
    nf = len(fill); fi = 0
    for k in range(4):
        if k in hooks: p.ext(hooks[k])
        m_ = []; seen = set(); od = order(k == 3); wr = {}
        for i, (a, m) in enumerate(od):
            pre = []
            for t in (f"t{k}_{a}", f"u{k}_{m}"):
                if t not in seen: seen.add(t); pre.append(I(f"@wlg {t}"))
            j = CACC + 4*(a + m)
            c = "0" if (k == 0 and ("a", a + m) not in seen) else f"v[{j}:{j+3}]"
            seen.add(("a", a + m))
            m_.append(pre + [I(f"v_mfma_f32_16x16x32_bf16 v[{j}:{j+3}], v[{CT[k&1]+4*a}:{CT[k&1]+4*a+3}], v[{CU[k&1]+4*m}:{CU[k&1]+4*m+3}], {c}")])
            if k == 3 and all(x + y != a + m for x, y in od[i+1:]): wr[a + m] = i
        rd = nxt
        if k < 3:
            ta = tadr(k+1)
            rd = [ta[0] + ta[1], ta[2] + ta[3]] + urd(k+1, [0]) + trd(k+1) + urd(k+1, range(1, 8))
        f = fill[fi: (nf*(k+1))//4]; fi = (nf*(k+1))//4
        start = OPT.get("cs0", 6) if k == 0 else 2
        out = []; ri = 0; gi = 0; lw = -9
        wq = sorted(wr, key=lambda j: wr[j])
        for i, mm in enumerate(m_):
            out += mm
            if i >= start + ri*(OPT.get("rsp", 15)/10 if OPT.get("tu", 0) == 1 else 1) and ri < len(rd): out += rd[ri]; ri += 1
            if wq and i >= wr[wq[0]] + 2 and i >= lw + 3:
                j = wq.pop(0); lw = i
                out.append(I(f"ds_write_b128 v{vPW}, v[{CACC+4*j}:{CACC+4*j+3}] offset:{1024*j}", "pw"))
            while gi < len(f) and gi * 36 <= i * len(f): out += f[gi]; gi += 1
        assert ri == len(rd)
        while gi < len(f): out += f[gi]; gi += 1
        p.ext(out)
    return p, wq
def hl(j, so=None):
    DH = OPT["DH"]
    return [[I(f"buffer_load_dwordx4 v[{HR+16*(j%DH)+4*s}:{HR+16*(j%DH)+4*s+3}], v{vH+s}, s[{sWS}:{sWS+3}], s{sHO+j if so is None else so} offen sc1", f"h{j}")] for s in range(4)]
def aout(rnd, wq, last=False, fill=[], nxt=[]):
    p = P(); pre_bar = None
    w = [I(f"ds_write_b128 v{vPW}, v[{CACC+4*j}:{CACC+4*j+3}] offset:{1024*j}", "pw") for j in wq]
    hq = list(fill)
    if last:
        p.wvm("ph")
        p(f"v_cmp_ne_u64 vcc, v[{vPOLL}:{vPOLL+1}], s[{sN}:{sN+1}]\ns_nop 3\ns_mov_b64 s[46:47], vcc\ns_cmp_eq_u64 s[46:47], 0")
        for j in range(OPT["DH"] - 1): p(f"s_cselect_b32 s{42+j}, s{sHO+j}, {OOB}")
        hq = sum((hl(j, 42 + j) for j in range(OPT["DH"] - 1)), [])
    n1 = OPT.get("hn", 4); n2 = OPT.get("hn2", 4)
    p.ext(w)
    for g in hq[:n1]: p.ext(g)
    hq2 = hq[n1+n2:]; hq = hq[n1:n1+n2]
    p0 = p; p = P()
    p(f"""s_lshl_b32 s{sC}, s{sWV}, 10
    s_add_u32 s{sC}, s{sC}, {PART}
    v_and_b32 v25, 1, v{vL}
    v_bfe_u32 v26, v{vL}, 1, 1
    v_lshrrev_b32 v27, 2, v{vL}
    v_lshl_add_u32 v27, v25, 3, v27
    v_and_b32 v27, 15, v27
    v_mul_u32_u24 v26, {CS}, v26
    v_lshl_add_u32 v26, v25, 9, v26
    v_lshl_add_u32 v26, v27, 4, v26
    v_add_u32 v26, s{sC}, v26
    v_lshrrev_b32 v27, 2, v0
    v_mul_u32_u24 v27, 20480, v27
    v_and_b32 v25, 3, v0
    v_lshl_add_u32 v27, v25, 4, v27
    s_add_u32 s{sC}, s{sPAIR}, {rnd}
    s_lshl_b32 s{sT1}, s{sC}, 6
    s_add_u32 s{sT1}, s{sT1}, {APR}
    s_add_u32 s{sT2}, s{sT1}, {64*20480}
    s_lshl_b32 s{sUS}, s{sC}, {FS}
    s_add_u32 s{sUS}, s{sUS}, {FLG_A}""")
    p0.ext(weave(p.l, hq, 1, 3) if hq else p.l); p = p0
    if pre_bar: p.ext(pre_bar)
    p("s_waitcnt lgkmcnt(0)\ns_barrier")
    for i in range(2):
        for h in range(2):
            for u in range(2): p(f"ds_read_b128 v[{96+16*i+8*h+4*u}:{99+16*i+8*h+4*u}], v26 offset:{4096*i+8192*h+256*u}", f"pr{i}")
    ha = OPT.get("ha", 1) and last
    if not ha:
        for g in hq2: p.ext(g)
    for i in range(2):
        p.wlg(f"pr{i}")
        if i == 1:
            for g in nxt: p.ext(g)
        b = 96 + 16*i
        for u in range(4): p(f"v_pk_add_f32 v[{b+2*u}:{b+2*u+1}], v[{b+2*u}:{b+2*u+1}], v[{b+8+2*u}:{b+9+2*u}]")
        for u in range(4): p(f"v_cvt_pk_bf16_f32 v{128+4*i+u}, v{b+2*u}, v{b+2*u+1}")
        p(f"buffer_store_dwordx4 v[{128+4*i}:{131+4*i}], v27, s[{sWS}:{sWS+3}], s{sT1 if i == 0 else sT2} offen sc1", "ast")
    if ha:
        for g in hq2: p.ext(g)
    return p
def hflag_hook(role, split=False):
    p = P()
    p(f"s_lshl_b32 s{sT1}, s{sRB}, {FS+4}\ns_lshl_b32 s{sC}, s{sCT}, {FS}\ns_add_u32 s{sT1}, s{sT1}, s{sC}\ns_add_u32 s{sT1}, s{sT1}, {FLG_H + (0 if role == 'A' else 12 << FS)}")
    if role == "C": p(f"s_lshl_b32 s{sT1}, s{sRB}, {FS+4}\ns_add_u32 s{sT1}, s{sT1}, {FLG_H + (15 << FS)}")
    p.wvm("hst")
    if split:
        q = P(); flag_store(q, sT1); return p, q
    p("s_barrier"); flag_store(p, sT1)
    return p
def tail_fill():
    q = P()
    q(f"s_mul_i32 s{sSPIN}, s{sC2}, 160\nv_lshl_add_u32 v12, v{vG}, 3, s{sSPIN}")
    g0 = [q.l]
    for db in range(5): g0.append([I(f"global_load_dwordx2 v[{46+2*db}:{47+2*db}], v12, s[{pB2}:{pB2+1}] offset:{32*db}", "b2")])
    q = P()
    q(f"""s_lshr_b32 s{sSPIN}, s{sRT}, 1
    s_lshl_b32 s{sSPIN}, s{sSPIN}, {FS+4}
    s_add_u32 s{sSPIN}, s{sSPIN}, {FLG_H}
    v_lshl_add_u32 v13, v{vN}, {FS}, s{sSPIN}""")
    poll_issue(q, vPOLL, 13, "ph")
    return g0, [q.l]
G2ACC = 64; HR = 144
def gemm2():
    p = P(); DH = OPT["DH"]; MG = OPT.get("MG", 3); DS = OPT.get("DS", 0)
    ls, lb = lab("slow"), lab("back")
    p(f"s_cmp_lg_u64 s[46:47], 0\ns_cbranch_scc1 {ls}\n{lb}:")
    SLOW.append(f"""{ls}:
s_mov_b32 s{sSPIN}, 0
{ls}l:
buffer_load_dwordx2 v[{vPOLL}:{vPOLL+1}], v13, s[{sWS}:{sWS+3}], 0 offen sc1
s_add_u32 s{sSPIN}, s{sSPIN}, 1
s_cmp_ge_u32 s{sSPIN}, 0x8000
s_cbranch_scc1 {ls}x
s_waitcnt vmcnt(0)
v_cmp_ne_u64 vcc, v[{vPOLL}:{vPOLL+1}], s[{sN}:{sN+1}]
s_cbranch_vccnz {ls}l
{ls}x:
s_waitcnt vmcnt(0)
""" + "".join(g[0].t + "\n" for j in range(DH - 1) for g in hl(j)) + f"""v_mov_b32 v12, {OOB}
buffer_load_dword v229, v12, s[{sWS}:{sWS+3}], 0 offen
buffer_load_dword v229, v12, s[{sWS}:{sWS+3}], 0 offen
s_branch {lb}
""")
    ts(p, 10)
    p.wvm("b2"); unpack(p, 36, 46, 5)
    srd(p, sT, pOut, 2048*1280)
    p(f"v_cmp_eq_u32 vcc, 192, v0\nv_mov_b32 v15, {OOB}\nv_cndmask_b32 v15, v15, 0, vcc".replace("192, v0", "v0, v0") if 0 else f"s_mov_b32 s{sC}, 192\nv_cmp_ne_u32 vcc, s{sC}, v0\nv_mov_b32 v15, {OOB}\nv_cndmask_b32 v15, 0, v15, vcc")
    AL = HR + 16*(14 % DH)
    def mf(j, s):
        m = []
        for db in range(5):
            a = G2ACC + 20*s + 4*db
            c = f"v[{a}:{a+3}]" if j else (f"v[{36+4*db}:{39+4*db}]" if s == 0 else "0")
            m.append(I(f"v_mfma_f32_16x16x32_bf16 v[{a}:{a+3}], {w2reg(5*j+db)}, v[{HR+16*(j%DH)+4*s}:{HR+16*(j%DH)+4*s+3}], {c}"))
        return m
    JF, JP, JA = OPT.get("JF", 2), OPT.get("JP", 8), 14 - MG - 1
    def acheck():
        q = P()
        poll_check(q, vPOLL, 13, "pa")
        q(f"""s_lshl_b32 s{sC}, s{sRT}, 2
        s_add_u32 s{sC}, s{sC}, s{sWV}
        s_mul_i32 s{sT1}, s{sC}, 20480
        s_lshl_b32 s{sT2}, s{sC}, 6
        s_mul_i32 s{sC}, s{sC2}, 2560
        s_add_u32 s{sT1}, s{sT1}, s{sC}
        s_add_u32 s{sT1}, s{sT1}, {APR}
        s_add_u32 s{sT2}, s{sT2}, {GBUF}
        v_cmp_gt_u32 vcc, 32, v{vL}
        v_mov_b32 v12, {OOB}
        v_lshlrev_b32 v13, 2, v{vN}
        v_cndmask_b32 v12, v12, v{vW2a}, vcc""")
        q(f"""buffer_load_dwordx4 v[{AL}:{AL+3}], v{vW2a}, s[{sWS}:{sWS+3}], s{sT1} offen sc1
        buffer_load_dwordx4 v[{AL+4}:{AL+7}], v{vW2a}, s[{sWS}:{sWS+3}], s{sT1} offen offset:1024 sc1
        buffer_load_dwordx4 v[{AL+8}:{AL+11}], v12, s[{sWS}:{sWS+3}], s{sT1} offen offset:2048 sc1
        buffer_load_dword v{vGv}, v13, s[{sWS}:{sWS+3}], s{sT2} offen sc1""", "ad")
        q(f"""s_lshl_b32 s{sC}, s{sRT}, 2
        s_add_u32 s{sC}, s{sC}, s{sWV}
        s_mul_i32 s{sT1}, s{sC}, 20480
        s_mul_i32 s{sC}, s{sC2}, 160
        s_add_u32 s{sT1}, s{sT1}, s{sC}""")
        return q
    for j in range(14 - MG):
        p.wvm(f"w2_{j}"); p.wvm(f"h{j}")
        if OPT.get("g2ts") and j in (0, 1, 2, 3, 4, 5, 7, 9): ts(p, {0:1, 1:2, 2:3, 3:4, 4:5, 5:6, 7:7, 9:8}[j])
        m = sum((mf(j, s) for s in range(4)), [])
        f = hl(j + DH - 1) if j + DH - 1 < 14 else []
        body = weave(m, f, 1, 5)
        ex = []
        if j == JF:
            q = P(); q.wvm("ast"); q("s_barrier")
            q(f"buffer_store_dwordx2 v[{vNON}:{vNON+1}], v15, s[{sWS}:{sWS+3}], s{sUS} offen sc1", "flag"); ex = [q.l]
            p.ext(q.l); ex = []
        if j == JP:
            q = P()
            q(f"""s_mul_i32 s{sC}, s{sC2}, {40 << FS}
            s_add_u32 s{sC}, s{sC}, {FLG_A}
            v_min_u32 v13, 39, v{vL}
            v_lshl_add_u32 v13, v13, {FS}, s{sC}""")
            poll_issue(q, vPOLL, 13, "pa"); ex = [q.l]
        if j == 1:
            q = P()
            for s in range(1, 4):
                q(f"s_xor_b32 s{sC}, s{sWV}, {s}\ns_mul_i32 s{sC}, s{sC}, 15360\ns_add_u32 s{sC}, s{sC}, {RED + (s-1)*5120}\nv_add_u32 v{24+s}, s{sC}, v{vW2a}")
            q(f"""s_mul_i32 s{sC}, s{sWV}, 15360
            s_add_u32 s{sC}, s{sC}, {RED}
            v_add_u32 v24, s{sC}, v{vW2a}
            s_mul_i32 s{sC}, s{sWV}, 3072
            s_add_u32 s{sC}, s{sC}, {AST}
            v_add_u32 v28, s{sC}, v{vW2a}
            v_lshl_add_u32 v29, v{vL}, 3, s{sC}
            v_mul_u32_u24 v30, {1280 if DS else 176}, v{vN}
            v_lshl_add_u32 v30, v{vG}, 3, v30""")
            if not DS: q(f"v_add_u32 v30, s{sC}, v30")
            body = weave(body, groups(q), 0, 0.7)
        if j == 2 and not DS:
            q = P()
            for i in range(3):
                q(f"""v_add_u32 v12, {64*i}, v{vL}
                v_mul_u32_u24 v13, 6554, v12
                v_lshrrev_b32 v13, 16, v13
                v_mul_u32_u24 v14, 10, v13
                v_sub_u32 v12, v12, v14
                v_mul_u32_u24 v14, 176, v13
                v_lshl_add_u32 v14, v12, 4, v14
                v_add_u32 v{16+i}, s{sC}, v14
                v_mul_u32_u24 v14, 1280, v13
                v_lshl_add_u32 v{20+i}, v12, 4, v14""")
            q(f"""v_cmp_gt_u32 vcc, 32, v{vL}
            v_mov_b32 v12, {OOB}
            v_cndmask_b32 v22, v12, v22, vcc""")
            body = weave(body, groups(q), 0, 0.6)
        body = weave(body, ex, 12, 1)
        p.ext(body)
    for j in range(14 - MG, 14): p.wvm(f"w2_{j}")
    if OPT.get("g2ts"): ts(p, 9)
    first = True
    wr = []
    for s in (1, 2, 3, 0):
        m = []
        for j in range(14 - MG, 14):
            mm = mf(j, s)
            if first: mm = [I(f"@wvm h{j}")] + mm
            m += mm
        if first: m = weave(m, groups(acheck()), OPT.get("JC", 2), 0.5)
        first = False
        m = weave(m, wr, 2, OPT.get("wst", 3))
        p.ext(m)
        wr = [[I(f"ds_write_b128 v{24+s}, v[{G2ACC+20*s+4*db}:{G2ACC+20*s+4*db+3}] offset:{db*1024}", "rw")] for db in range(5)]
    ts(p, 11)
    p.wvm("ad")
    for i in range(3): p(f"ds_write_b128 v28, v[{AL+4*i}:{AL+4*i+3}] offset:{i*1024}", "rw")
    p("s_waitcnt lgkmcnt(0)\ns_barrier")
    ts(p, 12)
    for db in range(5):
        p(f"ds_read_b64_tr_b16 v[{36+2*db}:{37+2*db}], v29 offset:{db*512}", f"r{db}")
        for s in range(1, 4):
            a = G2ACC + 20*s + 4*db
            p(f"ds_read_b128 v[{a}:{a+3}], v24 offset:{(s-1)*5120+db*1024}", f"r{db}")
    for db in range(5):
        p.wlg(f"r{db}")
        a = G2ACC + 4*db
        for s in range(1, 4):
            for u in (0, 2): p(f"v_pk_add_f32 v[{a+u}:{a+u+1}], v[{a+u}:{a+u+1}], v[{a+20*s+u}:{a+20*s+u+1}]")
        unpack(p, 48, 36 + 2*db, 1)
        for u in (0, 2): p(f"v_pk_add_f32 v[{48+u}:{49+u}], v[{48+u}:{49+u}], v[{a+u}:{a+u+1}] neg_lo:[0,1] neg_hi:[0,1]")
        for u in (0, 2): p(f"v_pk_fma_f32 v[{a+u}:{a+u+1}], v[{48+u}:{49+u}], v[{vGv}:{vGv+1}], v[{a+u}:{a+u+1}] op_sel_hi:[1,0,1]")
        if DS:
            p(f"v_cvt_pk_bf16_f32 v{144+2*db}, v{a}, v{a+1}\nv_cvt_pk_bf16_f32 v{145+2*db}, v{a+2}, v{a+3}")
            p(f"buffer_store_dwordx2 v[{144+2*db}:{145+2*db}], v30, s[{sT}:{sT+3}], s{sT1} offen offset:{32*db}", "out"); continue
        p(f"v_cvt_pk_bf16_f32 v{52+2*(db&1)}, v{a}, v{a+1}\nv_cvt_pk_bf16_f32 v{53+2*(db&1)}, v{a+2}, v{a+3}")
        p(f"ds_write_b64 v30, v[{52+2*(db&1)}:{53+2*(db&1)}] offset:{32*db}", "ow")
    for i in range(0 if DS else 3): p(f"ds_read_b128 v[{96+4*i}:{99+4*i}], v{16+i}", f"o{i}")
    for i in range(0 if DS else 3):
        p.wlg(f"o{i}")
        p(f"buffer_store_dwordx4 v[{96+4*i}:{99+4*i}], v{20+i}, s[{sT}:{sT+3}], s{sT1} offen " + OPT.get("ost", "").replace("_", " "), "out")
    finish(p)
    return p
def finish(p):
    if OPT["ts"]:
        p("s_waitcnt vmcnt(0)"); ts(p, 13)
        l = lab("tse")
        p(f"""s_cmp_lg_u32 s{sWV}, 0
        s_cbranch_scc1 {l}
        s_add_u32 s{pWs}, s{pWs}, {TS_OFF}
        s_addc_u32 s{pWs+1}, s{pWs+1}, 0
        s_lshl_b32 s{sC}, s2, 7
        v_lshl_add_u32 v12, v{vL}, 3, s{sC}
        s_mov_b64 exec, 0xffff
        global_store_dwordx2 v12, v[{vTS}:{vTS+1}], s[{pWs}:{pWs+1}]
        {l}:""")
    p("s_endpgm")
def dbg_dump_R(p):
    p(f"s_waitcnt vmcnt(0) lgkmcnt(0)\ns_barrier\ns_lshl_b32 s{sC}, s2, 15\ns_add_u32 s{sC}, s{sC}, {DBG}\nv_lshlrev_b32 v12, 4, v0")
    for i in range(8):
        p(f"ds_read_b128 v[64:67], v12 offset:{i*4096}\ns_waitcnt lgkmcnt(0)\nbuffer_store_dwordx4 v[64:67], v12, s[{sWS}:{sWS+3}], s{sC} offen\ns_add_u32 s{sC}, s{sC}, 4096\ns_waitcnt vmcnt(0)")
    p("s_endpgm")

def role_head(role):
    p = P()
    if role != "A": p(f"L_{role}:")
    prefetch_code(p, role)
    x, sl, pp, q = sA, sB, sOX, sOW
    if role == "A" and OPT.get("map", 0):
        p(f"""s_lshr_b32 s{sCT}, s{sl}, 1
        s_and_b32 s{sC}, s{sl}, 1
        s_lshl_b32 s{sRB}, s{x}, 1
        s_add_u32 s{sRB}, s{sRB}, s{sC}
        s_mul_i32 s{sPAIR}, s{x}, 24
        s_add_u32 s{sPAIR}, s{sPAIR}, s{sl}
        s_mul_i32 s{sC}, s{sC}, {OPT.get("ra", 5)}
        s_mul_i32 s{sCH}, s{x}, {OPT.get("rc", 3)}
        s_add_u32 s{sC}, s{sC}, s{sCH}
        s_add_u32 s{sC}, s{sC}, s{sCT}""")
        mod10(p, sCH, sC, sSPIN)
    elif role == "B" and OPT.get("map", 0):
        p(f"""s_sub_u32 s{sC}, s{sl}, 24
        s_lshr_b32 s{sCT}, s{sC}, 1
        s_and_b32 s{sC}, s{sC}, 1
        s_lshl_b32 s{sRB}, s{x}, 1
        s_add_u32 s{sRB}, s{sRB}, s{sC}
        s_mul_i32 s{sPAIR}, s{x}, 6
        s_add_u32 s{sPAIR}, s{sPAIR}, s{sl}
        s_lshl_b32 s{sPAIR}, s{sPAIR}, 1
        s_add_u32 s{sPAIR}, s{sPAIR}, {192-48}
        s_mul_i32 s{sC}, s{sC}, {OPT.get("ra", 5)}
        s_mul_i32 s{sCH}, s{x}, {OPT.get("rc", 3)}
        s_add_u32 s{sC}, s{sC}, s{sCH}
        s_mul_i32 s{sCH}, s{sCT}, 3
        s_add_u32 s{sC}, s{sC}, s{sCH}""")
        mod10(p, sCH, sC, sSPIN)
    elif role == "A":
        p(f"""s_mul_i32 s{sCT}, s{q}, 6
        s_lshr_b32 s{sC}, s{sl}, 2
        s_add_u32 s{sCT}, s{sCT}, s{sC}
        s_and_b32 s{sC}, s{sl}, 3
        s_lshl_b32 s{sRB}, s{pp}, 2
        s_add_u32 s{sRB}, s{sRB}, s{sC}
        s_mul_i32 s{sPAIR}, s{x}, 24
        s_add_u32 s{sPAIR}, s{sPAIR}, s{sl}
        s_mul_i32 s{sC}, s{sRB}, 3
        s_add_u32 s{sC}, s{sC}, s{sCT}""")
        mod10(p, sCH, sC, sSPIN)
    elif role == "B":
        p(f"""s_mul_i32 s{sC}, s{q}, 6
        s_add_u32 s{sC}, s{sC}, s{sl}
        s_sub_u32 s{sC}, s{sC}, 24
        s_lshr_b32 s{sCT}, s{sC}, 2
        s_and_b32 s{sC}, s{sC}, 3
        s_lshl_b32 s{sRB}, s{pp}, 2
        s_add_u32 s{sRB}, s{sRB}, s{sC}
        s_mul_i32 s{sPAIR}, s{x}, 6
        s_add_u32 s{sPAIR}, s{sPAIR}, s{sl}
        s_lshl_b32 s{sPAIR}, s{sPAIR}, 1
        s_add_u32 s{sPAIR}, s{sPAIR}, {192-48}
        s_add_u32 s{sC}, s{sRB}, s{sCT}
        s_mul_i32 s{sC}, s{sC}, 3
        s_add_u32 s{sC}, s{sC}, 6""")
        mod10(p, sCH, sC, sSPIN)
    else:
        p(f"""s_lshl_b32 s{sCT}, s{x}, 1
        s_add_u32 s{sCT}, s{sCT}, s{sl}
        s_sub_u32 s{sCT}, s{sCT}, 30
        s_lshl_b32 s{sPAIR}, s{sCT}, 1
        s_mov_b32 s{sRB}, s{sCT}
        s_add_u32 s{sPAIR}, s{sPAIR}, 288""")
    params_issue(p, role)
    if OPT.get('stop') == 0: p('s_waitcnt lgkmcnt(0)'); finish(p)
    pre = post = None
    kdt = OPT.get("kdt", 90)
    if role == "C":
        p.ext(c_setup())
        p(f"s_mov_b32 s{sSL}, s{sB}")
        p.ext(dma_c(0))
        nonce_issue(p)
        fill = sum((singles(dma_c(cc)) for cc in range(1, 8)), [])
        pre = P(); pre.wvm("gw"); kdt = OPT.get("kdtC", 48)
        p.ext(common_v())
    else:
        nw = 4 if role == "A" else 2
        p.ext(g1_setup(role))
        p(f"s_mov_b32 s{sKA}, s{sCH}\ns_mov_b32 s{sSL}, s{sB}")
        d0 = dma_x(0)
        for i in d0:
            if i.cls == "vmem": i.tag = "x0"
        p.ext(d0)
        if role == "A":
            p.ext(rl_setup())
            if not OPT.get("rlp", 1): p.ext(rl_dma())
            p.ext(ut_setup())
        nonce_issue(p)
        bi = g1_bias_issue(role).l; nb = len(bi) - nw
        p.ext(bi[:nb])
        p.ext(common_v())
        fill = singles(dma_w(0, nw)) + [bi[nb:]] + sum((singles(g) for g in [dma_x(1), dma_w(1, nw), dma_x(2), dma_w(2, nw)]), [])
        kdt = OPT.get("kdtB", 100)
        if role == "A":
            r = rl_xfer(); u = ut_xfer(); k0 = OPT.get("k0", 5); k1 = OPT.get("k1", 8)
            kdt = OPT.get("kdtA", 42)
            rd = singles(rl_dma()) if OPT.get("rlp", 1) else []
            fill = fill[:4] + rd + fill[4:k0] + [[I("@wvm x0")] + u[0]] + u[1:] + fill[k0:len(fill)-k1] + [r[0]] + r[1:] + fill[len(fill)-k1:]
            pre = P(); nonce_check(pre); pre.wvm("uts")
            post = P(); flag_store(post, sT2)
            if OPT.get("pfs", -1) == -1: pre.wvm("pst"); pre.ext(pflag().l)
    for g in g2_offsets(): p.ext(g)
    p("s_waitcnt lgkmcnt(0)")
    if role == "A":
        p(f"""s_lshl_b32 s{sGC}, s{sKA}, {FS+4}
        s_lshl_b32 s{sUS}, s{sKA}, 18
        s_lshl_b32 s{sC}, s{sRB}, 10
        s_add_u32 s{sUS}, s{sUS}, s{sC}
        s_add_u32 s{sUS}, s{sUS}, {UT}
        s_lshl_b32 s{sC}, s{sRB}, {FS}
        s_add_u32 s{sT2}, s{sGC}, s{sC}
        s_add_u32 s{sT2}, s{sT2}, {FLG_U}
        s_cmp_lt_u32 s{sCT}, 10
        s_cselect_b32 s{sUS}, s{sUS}, {OOB}
        s_cselect_b32 s{sT2}, s{sT2}, {OOB}""")
    ts(p, 1)
    if OPT.get("x2"):
        l = lab("lp")
        for g in fill: p.ext(g)
        p("s_waitcnt vmcnt(0) lgkmcnt(0)\ns_mov_b32 s41, 0"); ts(p, 2); p(f"{l}:")
        p.ext(kgen(vP0, 0, 54, [], 100, kdt, None, None))
        p(f"s_waitcnt lgkmcnt(0)\ns_barrier\ns_memtime s[{sA}:{sA+1}]\ns_add_u32 s41, s41, 1\ns_add_u32 m0, s41, 2\ns_waitcnt lgkmcnt(0)\nv_writelane_b32 v{vTS}, s{sA}, m0\nv_writelane_b32 v{vTS+1}, s{sA+1}, m0\ns_cmp_lt_u32 s41, 3\ns_cbranch_scc1 {l}")
        finish(p)
    p.ext(kgen(vP0, 0, 54, fill, 100, kdt, pre, post))
    if OPT["dbg"] == "R": dbg_dump_R(p)
    if role != "A": nonce_check(p)
    ts(p, 2)
    if OPT.get('stop') == 2: finish(p)
    return p
def build():
    SLOW.clear()
    out = []
    st0 = St(); e = entry(); out += resolve(e.l, st0)
    b2g, hpoll = None, None
    for role in "ABC":
        st = st0.copy()
        p = role_head(role)
        W = w2loads(0, 70)
        up = up_addr()
        if role == "A":
            n1, n2 = OPT.get("n1", 26), OPT.get("n2", 16)
            hu = OPT.get("hu", 19)
            hq = OPT.get("hq", 13); nk = 19 - hq
            sched = {hq - 4: up[1:], hq: p_check() + W[:2]}
            for k in range(nk): sched[hq + 1 + k] = W[2 + (n1-2)*k//nk: 2 + (n1-2)*(k+1)//nk]
            sched[hu - 4] = up[:1] + sched.get(hu - 4, []); sched[hu] = u_issue(role) + sched[hu]
            p.ext(cweave(g1_addr(role).l, singles(dma_x(3)), 0, 50))
            p.ext(gemm1("A", sched, {OPT.get("pfs", -1): ("pst", pflag())})); ts(p, 3)
            if OPT.get('stop') == 3: finish(p)
            p("s_nop 7")
            p.ext(gelu(role, W[n1:n1+n2], groups(u_write(role)) + conv_setup(0))); ts(p, 4)
            W = W[n1+n2:]
            hooks = {OPT.get("hk", 1): hflag_hook(role)}
        else:
            hs = []
            if role == "B":
                p.ext(cweave(g1_addr(role).l, singles(dma_x(3)), 0, 40)); p.ext(gemm1("B", {})); ts(p, 3)
                p("s_nop 7")
                p.ext(gelu(role, [], [], hs)); ts(p, 4)
            else:
                p.ext(cgate()); p("s_barrier"); ts(p, 3)
            n3, n4, n5 = OPT.get("n3", 36), OPT.get("n4", 0), OPT.get("n5", 2)
            pre, post = hflag_hook(role, True) if role == "C" else (None, P())
            gap = [[] for _ in range(OPT.get("ug" + role, 2 if role == "B" else 8))]
            n6 = OPT.get("n6", 0)
            for g in W[n4:n4+n6]: post.ext(g)
            tq = P()
            if OPT.get("kts"): ts(tq, 1)
            tq2 = P()
            if OPT.get("kts"): ts(tq2, 2)
            p.ext(kgen(vP1, 1, 55, gap + up + OPT.get("ug2", 5)*[[]] + [tq.l] + u_issue(role) + p_check() + [tq2.l] + hs + W[:n4], 100, 64, pre, post, 1, STG2, RB2)); ts(p, 7)
            W = W[n4+n6:]
            for g in conv_setup(0): p.ext(g)
            p.ext(u_write(role))
            cv, wq = conv(W[:n3], {2: hflag_hook(role)} if role == 'B' else {}, True, conv_setup(1, RB2, True) if OPT.get("inl", 1) else [])
            p.ext(cv); ts(p, 5); p.ext(aout(0, wq, fill=W[n3:n3+n5], nxt=[] if OPT.get('inl', 1) else conv_setup(1, RB2) + urd(0, range(8)))); ts(p, 6)
            q = P(); q.wvm("ast"); q("s_barrier"); flag_store(q, sUS)
            hooks = {OPT.get("hk1", 2): q}; W = W[n3+n5:]
        b2g, hpoll = tail_fill()
        hp = len(W) - OPT.get("hp", 6)
        cv, wq = conv(b2g + W[:hp] + hpoll + W[hp:], hooks, role == "A")
        p.ext(cv); ts(p, 8)
        p.ext(aout(0 if role == "A" else 1, wq, last=True))
        if not OPT.get("g2ts"): ts(p, 9)
        if OPT.get('stop') == 9: finish(p)
        p.ext(gemm2())
        out += resolve(p.l, st)
        out += P()("".join(SLOW) + f"L_{role}_end:").l
        SLOW.clear()
    ref = open("cdna_kernels/" + NAME + ".s.ref").read().split("\n")
    hdr = []
    for l in ref:
        if l.startswith("; @launch"): break
        hdr.append(l)
    K = NAME + "_kernel"
    hdr += [f"; @launch grid=(256,1,1) block=(256,1,1) lds={LDS}", '.amdgcn_target "amdgcn-amd-amdhsa--gfx950"', ".text", f".globl {K}", ".p2align 8", f".type {K},@function", f"{K}:"]
    wrap = lambda o: "\n".join(hdr) + "\n" + text(o) + tail
    tail = f"""L_end:
s_endpgm
.section .rodata,"a"
.p2align 6
.amdhsa_kernel {K}
  .amdhsa_next_free_vgpr 512
  .amdhsa_next_free_sgpr 102
  .amdhsa_accum_offset 256
  .amdhsa_group_segment_fixed_size 0
  .amdhsa_kernarg_size 144
  .amdhsa_user_sgpr_count 2
  .amdhsa_user_sgpr_kernarg_segment_ptr 1
  .amdhsa_system_sgpr_workgroup_id_x 1
.end_amdhsa_kernel
"""
    if OPT.get("al", 0): out = align(out, wrap, 3, OPT.get("al", 0))
    return wrap(out)
if __name__ == "__main__":
    fn = sys.argv[1]
    for a in sys.argv[2:]:
        k, v = a.split("=")
        OPT[k] = int(v) if v.lstrip("-").isdigit() else v
    open(fn, "w").write(build())
```
